```python
import torch

def _softmax(x, axis=-1):
    return torch.softmax(x, dim=axis)
def _gelu(x):
    return torch.nn.functional.gelu(x, approximate="tanh")
def _silu(x):
    return torch.nn.functional.silu(x)
def _sigmoid(x):
    return torch.sigmoid(x)
def _layernorm(x, axis=-1, eps=1e-5):
    m = x.mean(dim=axis, keepdim=True)
    v = x.var(dim=axis, keepdim=True, unbiased=False)
    return (x - m) / torch.sqrt(v + eps)
def _scatter_add(tgt, idx, src, axis=0):
    return tgt.clone().index_add_(axis, idx, src)
def _segment_sum(src, seg, n):
    out = torch.zeros((n,) + src.shape[1:], dtype=src.dtype)
    return out.index_add_(0, seg, src)
def _pad(x, pw):
    flat = tuple(v for pair in reversed(pw) for v in pair)
    return torch.nn.functional.pad(x, flat)

kernel_name = 'interleave_layers__spectral_gfnet__dense_activation_silu__prompt'

def setup_inputs():

    _w = (lambda a: (lambda t: t.to(torch.bfloat16) if t.is_floating_point() else t)(torch.as_tensor(a)))
    def _A_setup():
        B, S, D = 1, 2048, 1024
        Df = D // 2 + 1
        return {
            "x": _w((lambda *s: torch.randn(*s, dtype=torch.bfloat16) * 0.05)(B, S, D)),
            "w_r": _w((lambda *s: torch.randn(*s, dtype=torch.bfloat16) * 0.4)(S, Df) * 0.02),
            "w_i": _w((lambda *s: torch.randn(*s, dtype=torch.bfloat16) * 0.4)(S, Df) * 0.02),
        }
    _A_in = _A_setup()

    def _B_setup():
        B, S, D, F = 1, 2048, 1024, 3584
        return {
            "x": _w((lambda *s: torch.randn(*s, dtype=torch.bfloat16) * 0.05)(B, S, D)),
            "w1": _w((lambda *s: torch.randn(*s, dtype=torch.bfloat16) * 0.4)(D, F) * (D ** -0.5)),
            "w2": _w((lambda *s: torch.randn(*s, dtype=torch.bfloat16) * 0.1)(F, D) * (F ** -0.5)),
        }
    _B_in = _B_setup()

    return {
        "A_x": _A_in["x"],
        "A_w_r": _A_in["w_r"],
        "A_w_i": _A_in["w_i"],
        "B_x": _B_in["x"],
        "B_w1": _B_in["w1"],
        "B_w2": _B_in["w2"],
    }

def reference(A_x, A_w_r, A_w_i, B_x, B_w1, B_w2):
    def _A_ref(x, w_r, w_i):
        B, S, D = x.shape
        X = (lambda x, axes=(-2,-1): torch.fft.rfft2(x.float(), dim=axes))(x, axes=(-2, -1))
        W = w_r + 1j * w_i
        X = X * W
        y = (lambda x, s, axes=(-2,-1): torch.fft.irfft2(x, s=s, dim=axes).to(torch.bfloat16))(X, (S, D), axes=(-2, -1))
        return y

    def _B_ref(x, w1, w2):
        h = torch.einsum("bsd,df->bsf", x, w1)
        h = _silu(h)
        out = torch.einsum("bsf,fd->bsd", h, w2)
        return out

    x = A_x
    x = x + _A_ref(_layernorm(x, axis=-1), A_w_r, A_w_i)
    x = x + _B_ref(_layernorm(x, axis=-1), B_w1, B_w2)
    x = x + _A_ref(_layernorm(x, axis=-1), A_w_r, A_w_i)
    x = x + _B_ref(_layernorm(x, axis=-1), B_w1, B_w2)
    return x
```

```python
import sys
NDUMMY = int(sys.argv[1]) if len(sys.argv) > 1 else 0
OUT = sys.argv[2] if len(sys.argv) > 2 else 'naive.s'
MB = 1 << 20
X_OFF = 0
XN_OFF = 8*MB
KP = 576
AR_OFF = 16*MB; AI_OFF = 24*MB
BR_OFF = 32*MB; BI_OFF = 40*MB
H_OFF = 48*MB
L = []
K = []
def e(s): L.append('    ' + s)
def lab(s): L.append(s + ':')
def begin(name, nwg):
    L.append(f'.globl {name}\n.p2align 8\n.type {name},@function\n{name}:')
    e(f's_cmp_ge_u32 s2, {nwg}')
    e(f's_cbranch_scc1 {name}_end')
    e('s_load_dwordx2 s[4:5], s[0:1], 64')
    e('s_load_dwordx2 s[6:7], s[0:1], 0')
    e('s_load_dwordx2 s[8:9], s[0:1], 8')
    e('s_load_dwordx2 s[10:11], s[0:1], 16')
    e('s_load_dwordx2 s[12:13], s[0:1], 32')
    e('s_load_dwordx2 s[14:15], s[0:1], 40')
    e('s_load_dwordx2 s[16:17], s[0:1], 48')
    e('s_waitcnt lgkmcnt(0)')
    srd(20, 4, 268435456)
def srd(d, b, n):
    e(f's_mov_b32 s{d}, s{b}'); e(f's_mov_b32 s{d+1}, s{b+1}'); e(f's_mov_b32 s{d+2}, {n}'); e(f's_mov_b32 s{d+3}, 0x20000')
def end(name):
    lab(f'{name}_end'); e('s_endpgm')
def wavesum(v, t):
    for off in (0x041F,0x081F,0x101F,0x201F,0x401F):
        e(f'ds_swizzle_b32 v{t}, v{v} offset:{off}'); e('s_waitcnt lgkmcnt(0)'); e(f'v_add_f32 v{v}, v{v}, v{t}')
    e('s_nop 1'); e(f'v_readlane_b32 s40, v{v}, 0'); e(f'v_readlane_b32 s41, v{v}, 32'); e('s_nop 3')
    e(f'v_mov_b32 v{v}, s40'); e(f'v_add_f32 v{v}, s41, v{v}')

begin('cvt_kernel', 16384)
srd(24, 6, 4194304)
e('s_lshl_b32 s3, s2, 6'); e('v_add_u32 v1, s3, v0'); e('v_lshlrev_b32 v2, 2, v1'); e('v_lshlrev_b32 v3, 3, v1')
e('buffer_load_dword v4, v2, s[24:27], 0 offen'); e('s_waitcnt vmcnt(0)')
e('v_lshlrev_b32 v6, 16, v4'); e('v_and_b32 v7, 0xffff0000, v4')
e('buffer_store_dwordx2 v[6:7], v3, s[20:23], 0 offen')
end('cvt_kernel')
begin('fin_kernel', 16384)
srd(24, 16, 4194304)
e('s_lshl_b32 s3, s2, 6'); e('v_add_u32 v1, s3, v0'); e('v_lshlrev_b32 v2, 2, v1'); e('v_lshlrev_b32 v3, 3, v1')
e('buffer_load_dwordx2 v[6:7], v3, s[20:23], 0 offen'); e('s_waitcnt vmcnt(0)')
e('v_cvt_pk_bf16_f32 v4, v6, v7')
e('buffer_store_dword v4, v2, s[24:27], 0 offen')
end('fin_kernel')
begin('ln_kernel', 2048)
e('s_lshl_b32 s3, s2, 12'); e('v_lshlrev_b32 v1, 4, v0'); e('v_add_u32 v1, s3, v1')
for j in range(4): e(f'buffer_load_dwordx4 v[{8+4*j}:{11+4*j}], v1, s[20:23], 0 offen offset:{1024*j}')
e('s_waitcnt vmcnt(0)')
e('v_mov_b32 v2, 0')
for j in range(16): e(f'v_add_f32 v2, v2, v{8+j}')
wavesum(2, 3)
e('v_mul_f32 v2, 0x3a800000, v2')
e('v_mov_b32 v4, 0')
for j in range(16):
    e(f'v_sub_f32 v{8+j}, v{8+j}, v2'); e(f'v_fmac_f32 v4, v{8+j}, v{8+j}')
wavesum(4, 3)
e('v_mul_f32 v4, 0x3a800000, v4'); e('v_add_f32 v4, 0x3727c5ac, v4'); e('v_rsq_f32 v4, v4'); e('s_nop 1')
for j in range(16): e(f'v_mul_f32 v{8+j}, v{8+j}, v4')
e(f's_mov_b32 s30, {XN_OFF}')
for j in range(4): e(f'buffer_store_dwordx4 v[{8+4*j}:{11+4*j}], v1, s[20:23], s30 offen offset:{1024*j}')
end('ln_kernel')
def decode9():
    e('s_mov_b32 s30, 0x1c71c71d'); e('s_mul_hi_u32 s31, s2, s30'); e('s_mul_i32 s32, s31, 9'); e('s_sub_u32 s32, s2, s32')
    e('s_lshl_b32 s33, s32, 6'); e('v_add_u32 v1, s33, v0')
begin('rowdft_kernel', 2048*9)
decode9()
e('s_lshl_b32 s34, s31, 12'); e(f's_add_u32 s34, s34, {XN_OFF}'); e('s_add_u32 s36, s4, s34'); e('s_addc_u32 s37, s5, 0')
e('v_mov_b32 v2, 0'); e('v_mov_b32 v3, 0'); e('v_mov_b32 v4, 0')
e('s_mov_b32 s38, 0')
lab('rowdft_loop')
e('s_load_dwordx4 s[44:47], s[36:37], s38'); e('s_waitcnt lgkmcnt(0)')
for j in range(4):
    e('v_cvt_f32_u32 v5, v4'); e('v_mul_f32 v5, 0x3a800000, v5'); e('v_cos_f32 v6, v5'); e('v_sin_f32 v7, v5'); e('s_nop 0')
    e(f'v_fmac_f32 v2, s{44+j}, v6'); e(f'v_fmac_f32 v3, s{44+j}, v7')
    e('v_add_u32 v4, v4, v1'); e('v_and_b32 v4, 0x3ff, v4')
e('s_add_u32 s38, s38, 16'); e('s_cmp_lt_u32 s38, 4096'); e('s_cbranch_scc1 rowdft_loop')
e('v_sub_f32 v3, 0, v3')
e(f's_mul_i32 s34, s31, {KP*4}'); e('v_lshlrev_b32 v8, 2, v1'); e('v_add_u32 v8, s34, v8')
e(f's_mov_b32 s30, {AR_OFF}'); e('buffer_store_dword v2, v8, s[20:23], s30 offen')
e(f's_mov_b32 s31, {AI_OFF}'); e('buffer_store_dword v3, v8, s[20:23], s31 offen')
end('rowdft_kernel')
def coldft(name, sign, sr, si, dr, di, mulw):
    begin(name, 2048*9)
    decode9()
    e('v_lshlrev_b32 v8, 2, v1')
    e('v_mov_b32 v2, 0'); e('v_mov_b32 v3, 0')
    e('s_mov_b32 s38, 0'); e(f's_mov_b32 s39, {sr}'); e(f's_mov_b32 s40, {si}'); e('s_mov_b32 s41, 0')
    lab(name+'_loop')
    e('buffer_load_dword v10, v8, s[20:23], s39 offen'); e('buffer_load_dword v11, v8, s[20:23], s40 offen')
    e('v_cvt_f32_u32 v5, s41'); e('v_mul_f32 v5, 0x3a000000, v5'); e('v_cos_f32 v6, v5'); e('v_sin_f32 v7, v5')
    e('s_waitcnt vmcnt(0)')
    e('v_fmac_f32 v2, v10, v6'); e('v_fmac_f32 v3, v11, v6')
    if sign > 0:
        e('v_fma_f32 v2, -v11, v7, v2'); e('v_fma_f32 v3, v10, v7, v3')
    else:
        e('v_fma_f32 v2, v11, v7, v2'); e('v_fma_f32 v3, -v10, v7, v3')
    e('s_add_u32 s41, s41, s31'); e('s_and_b32 s41, s41, 0x7ff')
    e(f's_add_u32 s39, s39, {KP*4}'); e(f's_add_u32 s40, s40, {KP*4}')
    e('s_add_u32 s38, s38, 1'); e('s_cmp_lt_u32 s38, 2048'); e(f's_cbranch_scc1 {name}_loop')
    if mulw:
        srd(24, 8, 2048*513*2); srd(28, 10, 2048*513*2)
        e('s_mov_b32 s35, 0x1c71c71d'); e('s_mul_hi_u32 s36, s2, s35')
        e('s_mul_i32 s34, s36, 1026'); e('v_lshlrev_b32 v9, 1, v1'); e('v_add_u32 v9, s34, v9')
        e('buffer_load_ushort v12, v9, s[24:27], 0 offen'); e('buffer_load_ushort v13, v9, s[28:31], 0 offen'); e('s_waitcnt vmcnt(0)')
        e('v_lshlrev_b32 v12, 16, v12'); e('v_lshlrev_b32 v13, 16, v13')
        e('v_mul_f32 v14, v2, v12'); e('v_fma_f32 v14, -v3, v13, v14'); e('v_mul_f32 v15, v2, v13'); e('v_fma_f32 v15, v3, v12, v15')
        e('v_mov_b32 v2, v14'); e('v_mov_b32 v3, v15')
        e('s_mov_b32 s31, s36')
    e(f's_mul_i32 s34, s31, {KP*4}'); e('v_add_u32 v8, s34, v8')
    e(f's_mov_b32 s42, {dr}'); e('buffer_store_dword v2, v8, s[20:23], s42 offen')
    e(f's_mov_b32 s43, {di}'); e('buffer_store_dword v3, v8, s[20:23], s43 offen')
    end(name)
coldft('coldft_kernel', -1, AR_OFF, AI_OFF, BR_OFF, BI_OFF, True)
coldft('colidft_kernel', +1, BR_OFF, BI_OFF, AR_OFF, AI_OFF, False)
begin('rowidft_kernel', 2048*16)
e('s_lshr_b32 s31, s2, 4'); e('s_and_b32 s32, s2, 15'); e('s_lshl_b32 s33, s32, 6'); e('v_add_u32 v1, s33, v0')
e(f's_mul_i32 s34, s31, {KP*4}')
e(f's_add_u32 s35, s34, {AR_OFF}'); e('s_add_u32 s36, s4, s35'); e('s_addc_u32 s37, s5, 0')
e(f's_add_u32 s35, s34, {AI_OFF}'); e('s_add_u32 s48, s4, s35'); e('s_addc_u32 s49, s5, 0')
e('v_mov_b32 v2, 0'); e('v_mov_b32 v4, 0'); e('s_mov_b32 s38, 0')
lab('rowidft_loop')
e('s_load_dword s44, s[36:37], s38'); e('s_load_dword s45, s[48:49], s38'); e('s_waitcnt lgkmcnt(0)')
e('v_cvt_f32_u32 v5, v4'); e('v_mul_f32 v5, 0x3a800000, v5'); e('v_cos_f32 v6, v5'); e('v_sin_f32 v7, v5'); e('s_nop 0')
e('v_mul_f32 v6, s44, v6'); e('v_mul_f32 v7, s45, v7'); e('v_sub_f32 v6, v6, v7')
e('s_and_b32 s46, s38, 2047'); e('s_cmp_eq_u32 s46, 0'); e('s_cselect_b32 s46, 0.5, 1.0')
e('v_fmac_f32 v2, s46, v6')
e('v_add_u32 v4, v4, v1'); e('v_and_b32 v4, 0x3ff, v4')
e('s_add_u32 s38, s38, 4'); e('s_cmp_le_u32 s38, 2048'); e('s_cbranch_scc1 rowidft_loop')
e('v_mul_f32 v2, 0x35800000, v2')
e('s_lshl_b32 s34, s31, 12'); e('v_lshlrev_b32 v8, 2, v1'); e('v_add_u32 v8, s34, v8')
e('buffer_load_dword v9, v8, s[20:23], 0 offen'); e('s_waitcnt vmcnt(0)'); e('v_add_f32 v2, v2, v9')
e('buffer_store_dword v2, v8, s[20:23], 0 offen')
end('rowidft_kernel')
def gemm(name, Kd, N, a_off, wreg, silu, c_off):
    nch = N // 128
    begin(name, 2048*nch)
    srd(24, wreg, Kd*N*2)
    if nch == 28:
        e(f's_mov_b32 s30, {(1<<32)//28+1}'); e('s_mul_hi_u32 s31, s2, s30'); e('s_mul_i32 s32, s31, 28'); e('s_sub_u32 s32, s2, s32')
    else:
        e('s_lshr_b32 s31, s2, 3'); e('s_and_b32 s32, s2, 7')
    e('s_lshl_b32 s33, s32, 6'); e('v_add_u32 v1, s33, v0'); e('v_lshlrev_b32 v8, 2, v1')
    e(f's_mul_i32 s34, s31, {Kd*4}'); e(f's_add_u32 s34, s34, {a_off}'); e('s_add_u32 s36, s4, s34'); e('s_addc_u32 s37, s5, 0')
    e('v_mov_b32 v2, 0'); e('v_mov_b32 v3, 0'); e('s_mov_b32 s38, 0'); e('s_mov_b32 s39, 0')
    lab(name+'_loop')
    e('s_load_dwordx4 s[44:47], s[36:37], s38')
    for j in range(4):
        e(f'buffer_load_dword v{10+j}, v8, s[24:27], s39 offen'); e(f's_add_u32 s39, s39, {N*2}')
    e('s_waitcnt vmcnt(0) lgkmcnt(0)')
    for j in range(4):
        e(f'v_lshlrev_b32 v5, 16, v{10+j}'); e(f'v_and_b32 v6, 0xffff0000, v{10+j}')
        e(f'v_fmac_f32 v2, s{44+j}, v5'); e(f'v_fmac_f32 v3, s{44+j}, v6')
    e('s_add_u32 s38, s38, 16'); e(f's_cmp_lt_u32 s38, {Kd*4}'); e(f's_cbranch_scc1 {name}_loop')
    e(f's_mul_i32 s34, s31, {N*4}'); e('v_lshlrev_b32 v8, 3, v1'); e('v_add_u32 v8, s34, v8'); e(f's_mov_b32 s42, {c_off}')
    if silu:
        for r in (2, 3):
            e(f'v_mul_f32 v5, 0xbfb8aa3b, v{r}'); e('v_exp_f32 v5, v5'); e('s_nop 0'); e('v_add_f32 v5, 1.0, v5'); e('v_rcp_f32 v5, v5'); e('s_nop 0'); e(f'v_mul_f32 v{r}, v{r}, v5')
    else:
        e('buffer_load_dwordx2 v[6:7], v8, s[20:23], s42 offen'); e('s_waitcnt vmcnt(0)'); e('v_add_f32 v2, v2, v6'); e('v_add_f32 v3, v3, v7')
    e('buffer_store_dwordx2 v[2:3], v8, s[20:23], s42 offen')
    end(name)
gemm('gemm1_kernel', 1024, 3584, XN_OFF, 12, True, H_OFF)
gemm('gemm2_kernel', 3584, 1024, H_OFF, 14, False, X_OFF)
L.append('.globl dummy_kernel\n.p2align 8\n.type dummy_kernel,@function\ndummy_kernel:\n    s_endpgm')
seq = [('dummy_kernel', 256)]*NDUMMY + [('cvt_kernel', 16384)] + [('ln_kernel',2048),('rowdft_kernel',2048*9),('coldft_kernel',2048*9),('colidft_kernel',2048*9),('rowidft_kernel',2048*16),('ln_kernel',2048),('gemm1_kernel',2048*28),('gemm2_kernel',2048*8)]*2 + [('fin_kernel',16384)]
hdr = [f'; @launch kernel={n} grid=({g},1,1) block=(64,1,1) lds=0' for n, g in seq]
names = list(dict.fromkeys(n for n, _ in seq))
kd = ['.section .rodata,"a"']
for n in names:
    kd.append(f'''.p2align 6
.amdhsa_kernel {n}
  .amdhsa_next_free_vgpr 32
  .amdhsa_next_free_sgpr 64
  .amdhsa_accum_offset 32
  .amdhsa_group_segment_fixed_size 0
  .amdhsa_kernarg_size 72
  .amdhsa_user_sgpr_count 2
  .amdhsa_user_sgpr_kernarg_segment_ptr 1
  .amdhsa_system_sgpr_workgroup_id_x 1
.end_amdhsa_kernel''')
open(OUT, 'w').write('\n'.join(hdr + ['.amdgcn_target "amdgcn-amd-amdhsa--gfx950"', '.text'] + L + kd) + '\n')
```

```python
import re
_REG = re.compile(r'\b([vas])(\d+)\b|\b([vas])\[(\d+):(\d+)\]|\b(vcc|m0|exec)\b')
def _regs(s):
    out = []
    for m in _REG.finditer(s):
        if m.group(1): out.append((m.group(1), int(m.group(2))))
        elif m.group(3): out += [(m.group(3), i) for i in range(int(m.group(4)), int(m.group(5)) + 1)]
        else: out.append((m.group(6), 0))
    return out
TRANS = ('v_exp_f32', 'v_log_f32', 'v_rcp_f32', 'v_rsq_f32', 'v_sqrt_f32', 'v_sin_f32', 'v_cos_f32', 'v_rcp_iflag_f32')
class Ins:
    def __init__(self, line):
        self.line = line
        t = line.split(';')[0].strip()
        parts = t.split(None, 1)
        self.op = parts[0]; rest = parts[1] if len(parts) > 1 else ''
        ops = [x.strip() for x in re.split(r',(?![^\[]*\])', rest)]
        self.ops = ops
        op = self.op
        self.mfma = op.startswith('v_mfma')
        self.valu = op.startswith('v_') and not self.mfma
        self.trans = any(op.startswith(x) for x in TRANS)
        self.vmem = op.startswith(('buffer_', 'global_'))
        self.ds = op.startswith('ds_')
        self.salu = op.startswith('s_')
        self.ldsdma = self.vmem and (re.search(r'\blds\b', rest) is not None or 'load_lds' in op)
        self.dpp = '_dpp' in op or 'row_' in rest or 'quad_perm' in rest
        self.passes = (8 if '32x32' in op else 4) if self.mfma else 0
        w = []; r = []
        allr = [_regs(o) for o in ops]
        if self.vmem or self.ds:
            isload = ('load' in op or 'read' in op or 'permute' in op or 'swizzle' in op or ('atomic' in op and 'sc0' in rest)) and not self.ldsdma
            if isload:
                w = allr[0]; r = sum(allr[1:], [])
                if 'd16' in op or 'atomic' in op: r = r + allr[0]
            else: r = sum(allr, [])
            if self.ldsdma: r = r + [('m0', 0)]
        elif op.startswith(('s_cmp', 's_cbranch', 's_branch', 's_waitcnt', 's_barrier', 's_nop', 's_endpgm', 's_setprio', 's_sleep', 's_bitcmp')):
            r = sum(allr, [])
            if 'vcc' in op: r = r + [('vcc', 0)]
        elif 'permlane' in op and 'swap' in op:
            w = allr[0] + allr[1]; r = w
        elif op.startswith(('v_add_co', 'v_sub_co', 'v_addc_co', 'v_subb_co', 'v_subrev_co')):
            w = allr[0] + allr[1]; r = sum(allr[2:], [])
        else:
            w = allr[0] if allr else []; r = sum(allr[1:], [])
            if op.startswith(('v_fmac', 'v_dot2c', 'v_pk_fmac')) or self.dpp or 'UNUSED_PRESERVE' in rest: r = r + w
            if 'saveexec' in op: w = w + [('exec', 0)]
        self.w = set(w); self.r = set(r)
        if self.mfma:
            self.A = set(allr[1]) | set(allr[2]); self.C = set(allr[3]); self.Cl = allr[3]; self.Dl = allr[0]
        self.states = 1
        if op == 's_nop': self.states = int(ops[0], 0) + 1
        self.widestore = self.vmem and ('store_dwordx4' in op or 'store_dwordx3' in op)
        self.sdata = set(allr[0]) if self.widestore and op.startswith('buffer') else (set(allr[1]) if self.widestore else set())
def need(p, c):
    n = 0
    isv = lambda s: {x for x in s if x[0] in 'va' and len(x[0]) == 1}
    iss = lambda s: {x for x in s if x[0] in ('s', 'vcc')}
    if p.valu:
        pw = isv(p.w); ps = iss(p.w)
        if c.mfma and pw & c.r: n = max(n, 2)
        if p.trans and c.valu and not c.trans and pw & c.r: n = max(n, 1)
        if p.trans and (c.vmem or c.ds or c.mfma) and pw & c.r: n = max(n, 2)
        if 'permlane' in c.op and pw & c.r: n = max(n, 2)
        if c.op.startswith(('v_readlane', 'v_readfirstlane')) and pw & c.r: n = max(n, 1)
        if c.dpp and pw & c.r: n = max(n, 2)
        if ps:
            if c.valu and ps & c.r: n = max(n, 4 if c.op.startswith(('v_readlane', 'v_writelane')) else 2)
            if c.vmem and ps & c.r: n = max(n, 5)
            if c.salu and ps & c.r: n = max(n, 1)
        if 'sdwa' in p.op and 'dst_sel:DWORD' not in p.line and c.valu and pw & (c.r | c.w): n = max(n, 1)
        if p.op.startswith('v_dot') and not (c.op == p.op) and pw & (c.r | c.w): n = max(n, 3)
    if p.mfma:
        D = p.w; k = 8 if p.passes == 4 else 12
        if c.mfma:
            if D & c.A: n = max(n, k)
            if D & c.C and not (c.Cl == p.Dl and c.passes == p.passes): n = max(n, k - 2)
            if D & c.w and not (c.Dl == p.Dl and c.Cl == p.Dl): n = max(n, k)
        elif (c.valu or c.vmem or c.ds) and D & (c.r | c.w): n = max(n, k)
        if c.valu and p.C & c.w: n = max(n, 3 if p.passes == 4 else 7)
    if p.widestore and (c.valu or c.ds or c.vmem or c.mfma) and p.sdata & c.w: n = max(n, 2)
    if p.salu and ('m0', 0) in p.w and c.ldsdma: n = max(n, 1)
    if p.salu and ('exec', 0) in p.w and False: pass
    return n
def fix_hazards(lines):
    out = []; hist = []
    nins = 0
    for line in lines:
        s = line.strip()
        if not s or s.startswith(';') or s.endswith(':') or s.startswith('.'):
            out.append(line); continue
        c = Ins(s)
        dist = 0; req = 0
        for p in reversed(hist):
            nd = need(p, c)
            if nd > dist: req = max(req, nd - dist)
            dist += p.states
            if dist >= 20: break
        while req > 0:
            k = min(req, 16)
            out.append(f'    s_nop {k-1}'); hist.append(Ins(f's_nop {k-1}')); req -= k; nins += 1
        out.append(line); hist.append(c)
        if len(hist) > 40: hist = hist[-30:]
    return out

class Kern:
    def __init__(self, name, vgpr=256, agpr=0, sgpr=102):
        self.name = name; self.L = []; self.vgpr = vgpr; self.agpr = agpr; self.sgpr = sgpr
        self.lds = 0
    def e(self, s):
        for line in s.split('\n'):
            line = line.strip()
            if line: self.L.append('    ' + line)
    def lab(self, s): self.L.append(f'{self.name}_{s}:')
    def ln(self, s): return f'{self.name}_{s}'
    def c(self, s): self.L.append('    ; ' + s)
    def srd(self, d, b, n, off=0):
        if off:
            self.e(f's_add_u32 s{d}, s{b}, {off}'); self.e(f's_addc_u32 s{d+1}, s{b+1}, 0')
        else:
            self.e(f's_mov_b32 s{d}, s{b}'); self.e(f's_mov_b32 s{d+1}, s{b+1}')
        self.e(f's_mov_b32 s{d+2}, {n}'); self.e(f's_mov_b32 s{d+3}, 0x20000')
    def srd_table(self, d, sym, n):
        self.e(f's_getpc_b64 s[{d}:{d+1}]')
        self.e(f's_add_u32 s{d}, s{d}, {sym}@rel32@lo+4'); self.e(f's_addc_u32 s{d+1}, s{d+1}, {sym}@rel32@hi+12')
        self.e(f's_mov_b32 s{d+2}, {n}'); self.e(f's_mov_b32 s{d+3}, 0x20000')
    def text(self):
        return '\n'.join([f'.globl {self.name}', '.p2align 8', f'.type {self.name},@function', f'{self.name}:'] + fix_hazards(self.L))
    def kd(self):
        acc = (self.vgpr + 3)//4*4
        nfv = acc + self.agpr if self.agpr else self.vgpr
        return f'''.p2align 6
.amdhsa_kernel {self.name}
  .amdhsa_next_free_vgpr {nfv}
  .amdhsa_next_free_sgpr {self.sgpr}
  .amdhsa_accum_offset {acc}
  .amdhsa_group_segment_fixed_size 0
  .amdhsa_kernarg_size 72
  .amdhsa_user_sgpr_count 2
  .amdhsa_user_sgpr_kernarg_segment_ptr 1
  .amdhsa_system_sgpr_workgroup_id_x 1
  .amdhsa_float_denorm_mode_32 3
.end_amdhsa_kernel'''

def table_text(sym, blob):
    import numpy as np
    a = np.frombuffer(blob, dtype=np.uint64)
    out = ['.p2align 8', f'.type {sym},@object', f'{sym}:']
    for i in range(0, len(a), 16):
        out.append('.quad ' + ','.join(hex(int(x)) for x in a[i:i+16]))
    out.append(f'.size {sym}, {len(blob)}')
    return '\n'.join(out)

def write_file(path, launches, kerns, data=''):
    hdr = [f'; @launch kernel={n} grid=({g},1,1) block=({b},1,1) lds={l}' for n, g, b, l in launches]
    out = hdr + ['.amdgcn_target "amdgcn-amd-amdhsa--gfx950"', '.text']
    for k in kerns: out.append(k.text())
    out.append('.section .rodata,"a"')
    for k in kerns: out.append(k.kd())
    if data: out.append(data)
    open(path, 'w').write('\n'.join(out) + '\n')

def vr(b, n=4): return f'v[{b}:{b+n-1}]'
def ar(b, n=4): return f'a[{b}:{b+n-1}]'
```

```python
MB = 1 << 20
XA_OFF = 0; XB_OFF = 4*MB; P_OFF = 8*MB; H_OFF = 16*MB; W1_OFF = 32*MB; W2_OFF = 40*MB; WP_OFF = 48*MB; ST_OFF = 60*MB
ST2_OFF = ST_OFF + 8192
DBG_OFF = 64*MB
WS_BYTES = 268435456
X_BYTES = 4*MB
```

```python
from asmlib import *
MB = 1 << 20
XA_OFF = 0; XB_OFF = 4*MB; H_OFF = 16*MB; W1_OFF = 32*MB; W2_OFF = 40*MB; WP_OFF = 48*MB; ST_OFF = 60*MB
H_BYTES = 2048*3584*2; W_BYTES = 3584*1024*2; X_BYTES = 2048*1024*2

def gen_g2(name, NS=4, xin=XA_OFF, xout=XB_OFF, st_off=ST_OFF, mfma_per_load=2, nomfma=False, noload=False, xcdmap=True, stamp=None, sametile=False, ntload=''):
    nv = min(NS, 5) * 48 + 16
    na = 128 + max(0, NS - 5) * 48
    k = Kern(name, vgpr=nv, agpr=na, sgpr=64)
    def stage_reg(s, f):
        if s < 5: return vr(16 + 48*s + 4*f)
        return ar(128 + 48*(s-5) + 4*f)
    e = k.e
    e('s_cmp_ge_u32 s2, 256'); e(f's_cbranch_scc1 {k.ln("end")}')
    e('s_load_dwordx2 s[4:5], s[0:1], 64')
    if stamp is not None: e('s_memtime s[44:45]'); e('s_memrealtime s[46:47]')
    if xcdmap:
        e('s_and_b32 s6, s2, 7'); e('s_lshr_b32 s7, s2, 3')
        e('s_lshr_b32 s8, s6, 1'); e('s_lshl_b32 s8, s8, 2'); e('s_lshr_b32 s9, s7, 3'); e('s_add_u32 s8, s8, s9')
        e('s_and_b32 s9, s6, 1'); e('s_lshl_b32 s9, s9, 3'); e('s_and_b32 s10, s7, 7'); e('s_add_u32 s9, s9, s10')
    else:
        e('s_lshr_b32 s8, s2, 4'); e('s_and_b32 s9, s2, 15')
    if sametile: e('s_mov_b32 s8, 0'); e('s_mov_b32 s9, 0')
    e('v_lshrrev_b32 v1, 6, v0'); e('v_and_b32 v2, 63, v0'); e('s_nop 0')
    e('v_readfirstlane_b32 s10, v1')
    e('v_lshlrev_b32 v3, 4, v2')
    e('v_add_u32 v4, 4096, v3')
    e('s_nop 1')
    e('s_lshl_b32 s12, s10, 17'); e('s_lshl_b32 s13, s8, 13'); e('s_add_u32 s12, s12, s13')
    e('s_lshl_b32 s13, s10, 16'); e('s_lshl_b32 s14, s9, 12'); e('s_add_u32 s13, s13, s14')
    e('s_waitcnt lgkmcnt(0)')
    k.srd(16, 4, H_BYTES, H_OFF); k.srd(20, 4, W_BYTES, W2_OFF)
    k.srd(24, 4, X_BYTES, xin); k.srd(28, 4, X_BYTES, xout); k.srd(32, 4, 8192, st_off)
    def load(s, f):
        if noload: return []
        if f < 4: return [f'buffer_load_dwordx4 {stage_reg(s, f)}, v3, s[20:23], s13 offen offset:{1024*f}{ntload}']
        g = f - 4
        return [f'buffer_load_dwordx4 {stage_reg(s, f)}, v{3 + g//4}, s[16:19], s12 offen offset:{1024*(g%4)}{ntload}']
    def adv():
        return ['s_add_u32 s12, s12, 524288', 's_add_u32 s13, s13, 262144']
    for s in range(NS-1):
        for f in range(12):
            for x in load(s, f): e(x)
        for x in adv(): e(x)
    for i in range(128): e(f'v_accvgpr_write_b32 a{i}, 0')
    e(f's_mov_b32 s15, {28//NS}')
    if stamp is not None: e('s_memtime s[48:49]')
    k.lab('loop')
    for s in range(NS):
        e(f's_waitcnt vmcnt({12*(NS-2)})')
        ld = []
        for f in range(12): ld += load((s-1) % NS, f)
        ld += adv()
        n = 0
        for mt in range(8):
            for jt in range(4):
                if not nomfma:
                    e(f'v_mfma_f32_16x16x32_bf16 {ar(4*(mt*4+jt))}, {stage_reg(s, jt)}, {stage_reg(s, 4+mt)}, {ar(4*(mt*4+jt))}')
                n += 1
                if n % mfma_per_load == 0 and ld: e(ld.pop(0))
        for x in ld: e(x)
    e('s_sub_u32 s15, s15, 1'); e('s_cmp_lg_u32 s15, 0'); e(f's_cbranch_scc1 {k.ln("loop")}')
    if stamp is not None: e('s_memtime s[50:51]')
    e('s_lshl_b32 s36, s9, 18'); e('s_lshl_b32 s37, s8, 13'); e('s_add_u32 s36, s36, s37'); e('s_lshl_b32 s37, s10, 11'); e('s_add_u32 s36, s36, s37')
    e('s_add_u32 s37, s36, 131072')
    e('s_waitcnt vmcnt(0)')
    for u in range(2):
        for p in range(2):
            e(f'buffer_load_dwordx4 {vr(16+4*(u*2+p))}, v3, s[24:27], s{36+p} offen offset:{1024*u}')
    e('s_nop 4')
    for dd in range(1, 4):
        r = 3 - dd
        e(f's_add_u32 s40, s10, {dd}'); e('s_and_b32 s40, s40, 3'); e('s_mul_i32 s41, s40, 24576'); e(f's_add_u32 s41, s41, {r*8192}')
        e('v_add_u32 v5, s41, v3')
        for d in range(4):
            e(f's_cmp_lg_u32 s40, {d}'); e(f's_cbranch_scc1 {k.ln(f"w{dd}_{d}")}')
            for t in range(8):
                e(f'ds_write_b128 v5, {ar(32*d + 4*t)} offset:{1024*t}')
            k.lab(f'w{dd}_{d}')
    for d in range(4):
        e(f's_cmp_lg_u32 s10, {d}'); e(f's_cbranch_scc1 {k.ln(f"o{d}")}')
        for i in range(32): e(f'v_accvgpr_read_b32 v{64+i}, a{32*d+i}')
        k.lab(f'o{d}')
    e('s_waitcnt lgkmcnt(0)'); e('s_barrier')
    e('s_mul_i32 s41, s10, 24576'); e('v_add_u32 v5, s41, v3')
    for r in range(3):
        for t in range(8):
            e(f'ds_read_b128 {vr(96 + 32*r + 4*t)}, v5 offset:{8192*r + 1024*t}')
    e('v_mov_b32 v6, 1.0'); e('v_cmp_gt_u32 vcc, 16, v2'); e('s_cmp_eq_u32 s9, 0'); e('s_cselect_b64 vcc, vcc, 0'); e('s_nop 1')
    e('v_cndmask_b32 v6, v6, 0, vcc')
    e('s_waitcnt vmcnt(0)')
    for u in range(2):
        for p in range(2):
            for dw in range(4):
                src = 16 + 4*(u*2+p) + dw
                a0 = 64 + 4*(u*4 + 2*p) + 2*dw
                e(f'v_lshlrev_b32 v7, 16, v{src}'); e(f'v_and_b32 v8, 0xffff0000, v{src}')
                e(f'v_add_f32 v{a0}, v{a0}, v7'); e(f'v_add_f32 v{a0+1}, v{a0+1}, v8')
    for r in range(3):
        e(f's_waitcnt lgkmcnt({min(15,8*(2-r))})')
        for i in range(32): e(f'v_add_f32 v{64+i}, v{64+i}, v{96+32*r+i}')
    for u in range(2):
        for p in range(2):
            for dw in range(4):
                a0 = 64 + 4*(u*4 + 2*p) + 2*dw
                e(f'v_cvt_pk_bf16_f32 v{16+4*(u*2+p)+dw}, v{a0}, v{a0+1}')
            e(f'buffer_store_dwordx4 {vr(16+4*(u*2+p))}, v3, s[28:31], s{36+p} offen offset:{1024*u}')
    for u in range(2):
        b = 64 + 16*u
        e(f'v_mul_f32 v{10+u}, v{b}, v6'); e(f'v_mul_f32 v{10+u}, v{10+u}, v{b}')
        for i in range(1, 16): e(f'v_fmac_f32 v{10+u}, v{b+i}, v{b+i}')
    e('v_mov_b32 v12, v10'); e('v_mov_b32 v13, v11'); e('s_nop 1')
    e('v_permlane32_swap_b32 v10, v11')
    e('s_nop 1')
    e('v_add_f32 v10, v10, v11')
    e('v_mov_b32 v11, v10'); e('s_nop 1')
    e('v_permlane16_swap_b32 v10, v11')
    e('s_nop 1')
    e('v_add_f32 v10, v10, v11')
    e('v_and_b32 v12, 15, v2'); e('v_lshrrev_b32 v13, 5, v2'); e('v_lshl_add_u32 v12, v13, 4, v12'); e('v_lshlrev_b32 v12, 2, v12')
    e('s_lshl_b32 s40, s8, 9'); e('s_lshl_b32 s41, s10, 7'); e('s_add_u32 s40, s40, s41')
    e('v_and_b32 v13, 16, v2'); e('v_cmp_eq_u32 vcc, 0, v13'); e('s_and_saveexec_b64 s[42:43], vcc')
    e('buffer_atomic_add_f32 v10, v12, s[32:35], s40 offen')
    if stamp is not None:
        e('s_mov_b64 exec, 1'); e('s_waitcnt vmcnt(0)'); e('s_memtime s[52:53]'); e('s_memrealtime s[54:55]'); e('s_waitcnt lgkmcnt(0)')
        k.srd(32, 4, 1<<20, 64*MB + stamp*65536)
        e('s_lshl_b32 s40, s2, 2'); e('s_add_u32 s40, s40, s10'); e('s_lshl_b32 s40, s40, 5')
        e('s_sub_u32 s48, s48, s44'); e('s_sub_u32 s50, s50, s44'); e('s_sub_u32 s52, s52, s44')
        e('v_mov_b32 v16, s48'); e('v_mov_b32 v17, s50'); e('v_mov_b32 v18, s52'); e('v_mov_b32 v19, s46'); e('v_mov_b32 v20, s54'); e('v_mov_b32 v1, 0')
        e('buffer_store_dwordx4 v[16:19], v1, s[32:35], s40 offen'); e('buffer_store_dword v20, v1, s[32:35], s40 offen offset:16')
    k.lab('end'); e('s_endpgm')
    return k

if __name__ == '__main__':
    import sys
    variants = {
        'a': dict(NS=4), 'c': dict(NS=4, nomfma=True), 'e': dict(NS=4, noload=True), 'z': dict(NS=4, noload=True, nomfma=True),
        's': dict(NS=4, sametile=True), 't': dict(NS=4, sametile=True, nomfma=True), 'n': dict(NS=4, nomfma=True, ntload=' nt'), 'o': dict(NS=4, nomfma=True, ntload=' sc1'),
    }
    ks = []; launches = []
    for i, (n, kw) in enumerate(variants.items()):
        ks.append(gen_g2(f'g2{n}_kernel', stamp=i, **kw))
        launches += [(f'g2{n}_kernel', 256, 256, 98304)] * 5
    write_file('g2test.s', launches, ks)
```

```python
from asmlib import *
MB = 1 << 20
XA_OFF = 0; XB_OFF = 4*MB; P_OFF = 8*MB; H_OFF = 16*MB; W1_OFF = 32*MB; W2_OFF = 40*MB; WP_OFF = 48*MB; ST_OFF = 60*MB
WS_BYTES = 268435456

def gen_gemm(name, kind, xin=XA_OFF, R=None, stamp=None, nomfma=False, nodma=False, nods=False, bar_at=None, prio=None, noepi=False, map48=False, nostats=False, early=True, wrap=0):
    g1 = kind == 'g1'
    MT = 8; NT = 14 if g1 else 8
    NH = NT // 2
    NST = 16 if g1 else 28
    FR = MT + NT
    SB = 2 * FR * 1024
    if R is None: R = 3 if g1 else 4
    LDS = R * SB + 1024
    RS_LDS = R * SB
    PER = 2 * FR // 4
    groups = [4, 4, 3] if g1 else [4, 4]
    NACC = 4 * NH * 4
    k = Kern(name, vgpr=256, agpr=0, sgpr=80)
    e = k.e
    ACC = 16
    SETA = ACC + NACC
    NFR = 4 + NH
    SETB = SETA + 4 * NFR
    assert SETB + 4 * NFR <= 256
    e('s_cmp_ge_u32 s2, 256'); e(f's_cbranch_scc1 {k.ln("end")}')
    e('s_load_dwordx2 s[4:5], s[0:1], 64')
    if stamp is not None: e('s_memtime s[44:45]'); e('s_memrealtime s[46:47]')
    e('v_lshrrev_b32 v1, 6, v0'); e('v_and_b32 v2, 63, v0')
    e('s_and_b32 s6, s2, 7'); e('s_lshr_b32 s7, s2, 3')
    e('v_readfirstlane_b32 s10, v1')
    e('v_lshlrev_b32 v3, 4, v2')
    if g1 and map48:
        e('s_lshr_b32 s8, s6, 1'); e('s_lshl_b32 s8, s8, 2'); e('s_lshr_b32 s9, s7, 3'); e('s_add_u32 s8, s8, s9')
        e('s_and_b32 s9, s6, 1'); e('s_lshl_b32 s9, s9, 3'); e('s_and_b32 s11, s7, 7'); e('s_add_u32 s9, s9, s11')
    elif g1:
        e('s_lshr_b32 s8, s6, 2'); e('s_lshl_b32 s8, s8, 3'); e('s_lshr_b32 s9, s7, 2'); e('s_add_u32 s8, s8, s9')
        e('s_and_b32 s9, s6, 3'); e('s_lshl_b32 s9, s9, 2'); e('s_and_b32 s11, s7, 3'); e('s_add_u32 s9, s9, s11')
    else:
        e('s_lshr_b32 s8, s6, 1'); e('s_lshl_b32 s8, s8, 2'); e('s_lshr_b32 s9, s7, 3'); e('s_add_u32 s8, s8, s9')
        e('s_and_b32 s9, s7, 7')
        e('s_and_b32 s11, s6, 1')
    e('s_cmp_ge_u32 s10, 4'); e(f's_cbranch_scc1 {k.ln("consumer")}')
    XSTEP = 128 * 1024; WSTEP = (224 if g1 else 64) * 1024
    xb = xin if g1 else H_OFF; wb = W1_OFF if g1 else W2_OFF
    e('s_lshr_b32 s12, s10, 1'); e('s_and_b32 s13, s10, 1')
    if not g1:
        e('s_mul_i32 s14, s11, 56'); e('s_add_u32 s12, s12, s14')
    e(f's_mul_i32 s14, s12, {XSTEP}'); e('s_lshl_b32 s15, s8, 13'); e('s_add_u32 s14, s14, s15'); e(f's_add_u32 s14, s14, {xb}')
    e(f's_mul_i32 s15, s12, {WSTEP}'); e(f's_mul_i32 s16, s9, {NT*1024}'); e('s_add_u32 s15, s15, s16'); e(f's_add_u32 s15, s15, {wb}')
    e('s_cmp_eq_u32 s13, 0')
    if g1:
        e('s_add_u32 s16, s15, 3072'); e('s_add_u32 s17, s14, 4096'); e('s_add_u32 s18, s15, 7168'); e('s_add_u32 s19, s15, 11264')
        e('s_cmp_eq_u32 s13, 0')
        e('s_cselect_b32 s24, s14, s16'); e('s_cselect_b32 s25, s17, s18'); e('s_cselect_b32 s26, s15, s19')
        e(f's_mov_b32 s29, {2*WSTEP}'); e(f's_cselect_b32 s27, {2*XSTEP}, s29'); e('s_mov_b32 s28, s27')
    else:
        e('s_cselect_b32 s24, s14, s15'); e(f's_mov_b32 s29, {2*WSTEP}'); e(f's_cselect_b32 s27, {2*XSTEP}, s29'); e('s_mov_b32 s28, s27')
        e('s_add_u32 s25, s24, 4096')
    e(f's_mul_i32 s30, s10, {PER*1024}')
    e('s_mov_b32 s31, s30')
    e('s_waitcnt lgkmcnt(0)')
    k.srd(20, 4, WS_BYTES)
    if wrap:
        e('s_mov_b32 s60, 0')
        for g, n in enumerate(groups): e(f's_mov_b32 s{61+g}, s{24+g}')
    def issue():
        for g, n in enumerate(groups):
            e(f's_add_u32 m0, s31, {4096*g}' if g else 's_mov_b32 m0, s31')
            e('s_nop 0')
            for j in range(n):
                if not nodma: e(f'buffer_load_dwordx4 v3, s[20:23], s{24+g} offen offset:{1024*j} lds')
            e(f's_add_u32 s{24+g}, s{24+g}, s{27+g}')
        e(f's_add_u32 s31, s31, {SB}'); e(f's_cmp_ge_u32 s31, {R*SB}'); e('s_cselect_b32 s31, s30, s31')
        if wrap:
            e('s_add_u32 s60, s60, 1'); e(f's_cmp_eq_u32 s60, {wrap}'); e('s_cselect_b32 s60, 0, s60')
            for g, n in enumerate(groups): e(f's_cselect_b32 s{24+g}, s{61+g}, s{24+g}')
    for r in range(2 if early else R): issue()
    if g1:
        e('v_mov_b32 v10, 0'); e('v_mov_b32 v11, 0')
        e('s_lshl_b32 s32, s10, 11'); e('v_add_u32 v4, s32, v3'); e('s_mov_b32 s33, 0')
    e(f's_waitcnt vmcnt({PER*(1 if early else R-1)})'); e('s_barrier')
    if early:
        for r in range(2, R): issue()
    e('s_mov_b32 s34, 0')
    k.lab('lloop')
    if g1:
        e('v_add_u32 v5, s33, v4')
        for u in range(2):
            for t in range(2):
                e(f'ds_read_b128 {vr(16 + 8*u + 4*t)}, v5 offset:{u*FR*1024 + t*1024}')
        e(f's_add_u32 s33, s33, {SB}'); e(f's_cmp_ge_u32 s33, {R*SB}'); e('s_cselect_b32 s33, 0, s33')
        e('s_waitcnt lgkmcnt(0)')
        e('s_cmp_lg_u32 s34, 0'); e(f's_cbranch_scc1 {k.ln("nodc")}')
        e('v_cmp_gt_u32 vcc, 16, v2'); e('v_mov_b32 v6, -1'); e('v_mov_b32 v7, 0xffff0000'); e('v_cndmask_b32 v6, v6, v7, vcc')
        e('v_and_b32 v16, v16, v6'); e('v_and_b32 v20, v20, v6')
        k.lab('nodc')
        for u in range(2):
            for d in range(4):
                for t in range(2):
                    r = 16 + 8*u + 4*t + d
                    if nostats: continue
                    e(f'v_lshlrev_b32 v8, 16, v{r}'); e(f'v_and_b32 v9, 0xffff0000, v{r}')
                    e(f'v_fmac_f32 v{10+t}, v8, v8'); e(f'v_fmac_f32 v{10+t}, v9, v9')
    e(f's_cmp_ge_u32 s34, {NST-R+1}'); e(f's_cbranch_scc1 {k.ln("ltail")}')
    e(f's_waitcnt vmcnt({PER*(R-2)})'); e('s_barrier')
    e(f's_cmp_ge_u32 s34, {NST-R}'); e(f's_cbranch_scc1 {k.ln("lnext")}')
    issue()
    e(f's_branch {k.ln("lnext")}')
    k.lab('ltail')
    e('s_waitcnt vmcnt(0)' if R <= 3 else f's_waitcnt vmcnt(0)'); e('s_barrier')
    k.lab('lnext')
    e('s_add_u32 s34, s34, 1'); e(f's_cmp_lt_u32 s34, {NST}'); e(f's_cbranch_scc1 {k.ln("lloop")}')
    if g1:
        e('s_nop 2')
        e('v_permlane32_swap_b32 v10, v11'); e('s_nop 1'); e('v_add_f32 v10, v10, v11'); e('v_mov_b32 v11, v10'); e('s_nop 1')
        e('v_permlane16_swap_b32 v10, v11'); e('s_nop 1'); e('v_add_f32 v10, v10, v11')
        e('v_mov_b32 v12, 0x3727c5ac'); e('v_fmac_f32 v12, 0x3a800000, v10'); e('v_rsq_f32 v12, v12'); e('s_nop 0'); e('v_mul_f32 v12, 0x3fb8aa3b, v12')
        e('v_and_b32 v13, 15, v2'); e('v_lshrrev_b32 v14, 5, v2'); e('v_lshl_add_u32 v13, v14, 4, v13'); e('v_lshlrev_b32 v13, 2, v13')
        e('s_lshl_b32 s32, s10, 7'); e(f's_add_u32 s32, s32, {RS_LDS}'); e('v_add_u32 v13, s32, v13')
        e('ds_write_b32 v13, v12'); e('s_waitcnt lgkmcnt(0)'); e('s_barrier')
    e(f's_branch {k.ln("end")}')
    k.lab('consumer')
    if prio is not None: e(f's_setprio {prio}')
    e('s_and_b32 s12, s10, 1'); e('s_bfe_u32 s13, s10, 0x10001')
    e('s_lshl_b32 s14, s12, 12'); e('v_add_u32 v4, s14, v3')
    e(f's_mul_i32 s14, s13, {NH*1024}'); e(f's_add_u32 s14, s14, {MT*1024}'); e('v_add_u32 v5, s14, v3')
    for i in range(NACC): e(f'v_mov_b32 v{ACC+i}, 0')
    e('v_mov_b32 v6, v4'); e('v_mov_b32 v7, v5')
    e('s_mov_b32 s33, 0'); e('s_mov_b32 s34, 0')
    e('s_waitcnt lgkmcnt(0)')
    k.srd(20, 4, WS_BYTES)
    def reads(base, u):
        out = []
        order = [('n', 0)] + [('m', i) for i in range(4)] + [('n', i) for i in range(1, NH)]
        for kind_, i in order:
            if nods: continue
            if kind_ == 'm': out.append(f'ds_read_b128 {vr(base + 4*i)}, v6 offset:{u*FR*1024 + i*1024}')
            else: out.append(f'ds_read_b128 {vr(base + 16 + 4*i)}, v7 offset:{u*FR*1024 + i*1024}')
        return out
    def mfmas(base):
        out = []
        for n in range(NH):
            for m in range(4):
                a = ACC + 4*(n*4 + m)
                out.append(f'v_mfma_f32_16x16x32_bf16 {vr(a)}, {vr(base + 16 + 4*n)}, {vr(base + 4*m)}, {vr(a)}' if not nomfma else None)
        return out
    e('s_barrier')
    if stamp is not None: e('s_memtime s[48:49]')
    for x in reads(SETA, 0): e(x)
    e('s_waitcnt lgkmcnt(0)')
    k.lab('cloop')
    NM = 4 * NH
    ba = bar_at if bar_at is not None else (NM * 5) // 7
    rd = reads(SETB, 1)
    for i, x in enumerate(mfmas(SETA)):
        if x: e(x)
        if rd: e(rd.pop(0))
        if i == ba - 3:
            e(f's_add_u32 s33, s33, {SB}'); e(f's_cmp_ge_u32 s33, {R*SB}'); e('s_cselect_b32 s33, 0, s33')
        if i == ba - 1:
            assert not rd
            e('s_waitcnt lgkmcnt(0)'); e('s_barrier')
            e('v_add_u32 v6, s33, v4'); e('v_add_u32 v7, s33, v5')
    rd = reads(SETA, 0)
    for i, x in enumerate(mfmas(SETB)):
        if x: e(x)
        if rd: e(rd.pop(0))
        if i == NM - 3:
            e('s_add_u32 s34, s34, 1'); e(f's_cmp_lt_u32 s34, {NST}')
    e('s_waitcnt lgkmcnt(0)')
    e(f's_cbranch_scc1 {k.ln("cloop")}')
    if stamp is not None: e('s_memtime s[50:51]')
    T = SETA
    if g1:
        e('s_barrier')
        e('v_and_b32 v8, 15, v2'); e('v_lshlrev_b32 v8, 2, v8'); e('s_lshl_b32 s14, s12, 8'); e(f's_add_u32 s14, s14, {RS_LDS}'); e('v_add_u32 v8, s14, v8')
        for m in range(4): e(f'ds_read_b32 v{10+m}, v8 offset:{64*m}')
        e('s_mul_i32 s14, s9, 7'); e('s_lshl_b32 s15, s13, 2'); e('s_add_u32 s15, s15, s14'); e('s_lshl_b32 s15, s15, 17')
        e('s_lshl_b32 s16, s8, 13'); e('s_lshl_b32 s17, s12, 12'); e('s_add_u32 s16, s16, s17'); e(f's_add_u32 s16, s16, {H_OFF}')
        e('s_add_u32 s15, s15, s16')
        e('s_add_u32 s14, s14, 3'); e('s_lshl_b32 s14, s14, 17'); e('s_add_u32 s14, s14, s16'); e('s_lshl_b32 s17, s13, 3'); e('s_add_u32 s14, s14, s17')
        e('s_mov_b32 s18, 0x3fb8aa3b')
        e('s_waitcnt lgkmcnt(0)')
        def silu4(a, m, dst):
            for i in range(4): e(f'v_mul_f32 v{a+i}, v{a+i}, v{10+m}')
            for i in range(4): e(f'v_exp_f32 v{T+i}, -v{a+i}')
            for i in range(4): e(f'v_fma_f32 v{T+i}, v{T+i}, s18, s18')
            for i in range(4): e(f'v_rcp_f32 v{T+i}, v{T+i}')
            for i in range(4): e(f'v_mul_f32 v{a+i}, v{a+i}, v{T+i}')
            e(f'v_cvt_pk_bf16_f32 v{dst}, v{a}, v{a+1}'); e(f'v_cvt_pk_bf16_f32 v{dst+1}, v{a+2}, v{a+3}')
        if not noepi:
            cnt = 0
            for pj in range(3):
                for m in range(4):
                    d = T + 8 + 4*(cnt % 8); cnt += 1
                    silu4(ACC + 4*((2*pj)*4 + m), m, d); silu4(ACC + 4*((2*pj+1)*4 + m), m, d+2)
                    e(f'buffer_store_dwordx4 {vr(d)}, v3, s[20:23], s15 offen offset:{1024*m}')
                e('s_add_u32 s15, s15, 131072')
            for m in range(4):
                d = T + 8 + 4*(cnt % 8); cnt += 1
                silu4(ACC + 4*(6*4 + m), m, d)
                e(f'buffer_store_dwordx2 {vr(d, 2)}, v3, s[20:23], s14 offen offset:{1024*m}')
    else:
        e('s_lshl_b32 s14, s9, 2'); e('s_lshl_b32 s15, s13, 1'); e('s_add_u32 s15, s15, s14'); e('s_lshl_b32 s15, s15, 17')
        e('s_lshl_b32 s16, s8, 13'); e('s_lshl_b32 s17, s12, 12'); e('s_add_u32 s16, s16, s17'); e(f's_add_u32 s16, s16, {P_OFF}')
        e('s_lshl_b32 s17, s11, 22'); e('s_add_u32 s16, s16, s17'); e('s_add_u32 s15, s15, s16')
        e('s_nop 7')
        cnt = 0
        for p in range(2):
            for m in range(4):
                d = T + 4*cnt; cnt += 1
                for u in range(2):
                    a = ACC + 4*((2*p+u)*4 + m)
                    e(f'v_cvt_pk_bf16_f32 v{d+2*u}, v{a}, v{a+1}'); e(f'v_cvt_pk_bf16_f32 v{d+2*u+1}, v{a+2}, v{a+3}')
                e(f'buffer_store_dwordx4 {vr(d)}, v3, s[20:23], s15 offen offset:{1024*m}')
            e('s_add_u32 s15, s15, 131072')
    if stamp is not None:
        e('s_mov_b64 exec, 1'); e('s_waitcnt vmcnt(0)'); e('s_memtime s[52:53]'); e('s_memrealtime s[54:55]'); e('s_waitcnt lgkmcnt(0)')
        e('s_lshl_b32 s40, s2, 2'); e('s_add_u32 s40, s40, s10'); e('s_sub_u32 s40, s40, 4'); e('s_lshl_b32 s40, s40, 5'); e(f's_add_u32 s40, s40, {64*MB + stamp*65536}')
        e('s_sub_u32 s48, s48, s44'); e('s_sub_u32 s50, s50, s44'); e('s_sub_u32 s52, s52, s44')
        e('v_mov_b32 v16, s48'); e('v_mov_b32 v17, s50'); e('v_mov_b32 v18, s52'); e('v_mov_b32 v19, s46'); e('v_mov_b32 v20, s54'); e('v_mov_b32 v1, 0'); e('s_getreg_b32 s56, hwreg(HW_REG_XCC_ID)'); e('v_mov_b32 v21, s56')
        e('buffer_store_dwordx4 v[16:19], v1, s[20:23], s40 offen'); e('buffer_store_dwordx2 v[20:21], v1, s[20:23], s40 offen offset:16')
    k.lab('end'); e('s_endpgm')
    k.lds = LDS
    return k

if __name__ == '__main__':
    variants = {
        'g1a': dict(kind='g1'), 'g2a': dict(kind='g2'),
        'g2b': dict(kind='g2', nomfma=True), 'g2w': dict(kind='g2', nomfma=True, wrap=4), 'g2x': dict(kind='g2', wrap=4), 'g2y': dict(kind='g2', nomfma=True, nods=True, wrap=2),
        'g1b': dict(kind='g1', nomfma=True, nostats=True), 'g1w': dict(kind='g1', nomfma=True, nostats=True, wrap=3), 'g1x': dict(kind='g1', nostats=True, wrap=3), 'g1o': dict(kind='g1', nostats=True),
    }
    ks = []; L = {}
    for i, (n, kw) in enumerate(variants.items()):
        kk = gen_gemm(f'{n}_kernel', stamp=i, **kw)
        ks.append(kk); L[n] = (kk.name, 256, 512, kk.lds)
    launches = [L['g1a'], L['g2a']]
    for n in list(variants)[2:]: launches += [L[n]]*4
    write_file('gemmtest.s', launches, ks)
```

```python
from asmlib import *
from common import *

def interleave(e, mf, va, ratio=2):
    mf = list(mf); va = list(va)
    for m in mf:
        e(m)
        for _ in range(ratio):
            if va: e(va.pop(0))
    for x in va: e(x)

def mfma(d, a, b, c=None):
    cs = vr(d) if c is None else c
    return f'v_mfma_f32_16x16x32_bf16 {vr(d)}, {vr(a)}, {vr(b)}, {cs}'

class Stamps:
    def __init__(self, k, idx, base=80):
        self.k = k; self.idx = idx; self.n = 0; self.base = base
    def __call__(self):
        if self.idx is None: return
        self.k.e(f's_memtime s[{self.base+2*self.n}:{self.base+2*self.n+1}]'); self.n += 1
    def finish(self, srd, wavereg, wg='s2', nw=4):
        if self.idx is None: return
        e = self.k.e
        e('s_mov_b64 exec, 1'); e('s_waitcnt vmcnt(0)'); self(); e('s_waitcnt lgkmcnt(0)')
        e(f's_mul_i32 s40, {wg}, {nw}'); e(f's_add_u32 s40, s40, {wavereg}'); e('s_lshl_b32 s40, s40, 5'); e(f's_add_u32 s40, s40, {DBG_OFF + self.idx*262144}')
        e('v_mov_b32 v1, 0')
        for i in range(1, self.n):
            e(f's_sub_u32 s41, s{self.base+2*i}, s{self.base}'); e('v_mov_b32 v16, s41')
            e(f'buffer_store_dword v16, v1, s[{srd}:{srd+3}], s40 offen offset:{4*(i-1)}')

K2_LDS = 24576 + 32768
def emit_k2(k, xin, xout, st_off, wg='s2', stamp=None, tab='tab_k2', zero_off=None):
    e = k.e
    st = Stamps(k, stamp)
    X = 16; F32 = 32; F64 = 64; T2C = 128; T2S = 144; WP = 160
    RS = 176; RS0 = 184; AF = 192; D1 = 208; T1C = 240; T1S = 248
    BF = 176; D2 = 208; E1 = 176; CF = 208; Y = 64
    EX = 24576
    e('s_load_dwordx2 s[4:5], s[0:1], 64')
    st()
    k.srd_table(12, tab, 24576)
    e('v_lshrrev_b32 v7, 6, v0'); e('v_and_b32 v1, 63, v0'); e('v_and_b32 v2, 15, v0'); e('v_bfe_u32 v3, v0, 4, 2')
    e('v_readfirstlane_b32 s10, v7')
    e('v_lshlrev_b32 v4, 4, v1')
    e('s_mul_i32 s11, s10, 6144'); e('s_mov_b32 m0, s11')
    for j in range(4): e(f'buffer_load_dwordx4 v4, s[12:15], s11 offen offset:{1024*j} lds')
    e('s_add_u32 s11, s11, 4096'); e('s_mov_b32 m0, s11')
    for j in range(2): e(f'buffer_load_dwordx4 v4, s[12:15], s11 offen offset:{1024*j} lds')
    e(f's_bfe_u32 s6, {wg}, 0x10003')
    e(f's_and_b32 s7, {wg}, 7'); e(f's_lshr_b32 s8, {wg}, 4'); e('s_lshl_b32 s8, s8, 3'); e('s_add_u32 s7, s7, s8')
    e('s_lshr_b32 s8, s7, 2'); e('s_and_b32 s9, s7, 3')
    e('s_lshl_b32 s20, s8, 17'); e('s_lshl_b32 s9, s9, 8'); e('s_add_u32 s20, s20, s9'); e('s_lshl_b32 s9, s6, 3'); e('s_add_u32 s20, s20, s9')
    e('s_lshl_b32 s9, s10, 10'); e('s_add_u32 s20, s20, s9')
    for l in range(1, 8): e(f's_add_u32 s{20+l}, s20, {(l >> 2)*65536 + (l & 3)*4096}')
    e('v_lshlrev_b32 v5, 14, v3'); e('v_lshl_add_u32 v5, v2, 4, v5')
    e('v_lshlrev_b32 v6, 10, v3'); e('v_lshl_add_u32 v6, v2, 2, v6')
    e('s_lshl_b32 s28, s10, 6'); e(f's_add_u32 s28, s28, {st_off}'); e('s_add_u32 s29, s28, 4096')
    e('s_lshl_b32 s30, s7, 3'); e('s_lshl_b32 s31, s6, 2'); e('s_add_u32 s30, s30, s31'); e('s_add_u32 s30, s30, s10'); e('s_lshl_b32 s30, s30, 12'); e(f's_add_u32 s30, s30, {WP_OFF}')
    e(f's_cmp_eq_u32 {wg}, 0'); e('s_cselect_b32 s31, 0, 1.0')
    e('s_waitcnt lgkmcnt(0)')
    k.srd(16, 4, WS_BYTES); k.srd(32, 4, X_BYTES, xin); k.srd(36, 4, X_BYTES, xout)
    for l in range(8): e(f'buffer_load_dword v{RS+l}, v6, s[16:19], s{28 + (l >> 2)} offen offset:{256*(l & 3)}')
    for l in range(8): e(f'buffer_load_dwordx2 {vr(X+2*l, 2)}, v5, s[32:35], s{20+l} offen')
    for m in range(4): e(f'buffer_load_dwordx4 {vr(WP+4*m)}, v4, s[16:19], s30 offen offset:{1024*m}')
    if zero_off is not None:
        e('v_mov_b32 v8, 0'); e('v_lshlrev_b32 v9, 2, v0'); e(f's_lshl_b32 s42, {wg}, 5'); e(f's_add_u32 s42, s42, {zero_off}')
        e('v_cmp_gt_u32 vcc, 8, v0'); e('s_and_saveexec_b64 s[44:45], vcc'); e('buffer_store_dword v8, v9, s[16:19], s42 offen'); e('s_mov_b64 exec, s[44:45]')
    nz = 1 if zero_off is not None else 0
    e('s_lshl_b32 s9, s10, 10'); e(f's_add_u32 s9, s9, {EX}'); e('v_add_u32 v14, s9, v4')
    e('s_lshl_b32 s9, s10, 13'); e(f's_add_u32 s9, s9, {EX}'); e('v_add_u32 v15, s9, v4')
    e('s_lshl_b32 s9, s10, 4'); e('v_lshl_add_u32 v8, v3, 2, s9'); e('v_cvt_f32_u32 v8, v8')
    e('v_cvt_f32_u32 v9, v2'); e('v_mul_f32 v10, 0x3a000000, v9'); e('v_add_f32 v11, 0x3c000000, v10')
    for r in range(4):
        if r: e('v_add_f32 v8, 1.0, v8')
        for nu in range(2):
            e(f'v_mul_f32 v12, v8, v{10+nu}'); e(f'v_cos_f32 v{T1C+4*nu+r}, v12'); e(f'v_sin_f32 v{T1S+4*nu+r}, v12')
    e(f's_waitcnt vmcnt({20+nz})'); e('s_barrier')
    for f in range(8): e(f'ds_read_b128 {vr(F32+4*f)}, v4 offset:{1024*f}')
    e('s_and_b32 s9, s10, 1'); e('s_lshl_b32 s9, s9, 4'); e('v_lshl_add_u32 v8, v3, 2, s9'); e('v_cvt_f32_u32 v8, v8')
    e('v_add_f32 v12, 0x3c000000, v11'); e('v_add_f32 v13, 0x3c000000, v12')
    for r in range(4):
        if r: e('v_add_f32 v8, 1.0, v8')
        for w2 in range(4):
            e(f'v_mul_f32 v9, v8, v{10+w2}'); e(f'v_cos_f32 v{T2C+4*w2+r}, v9'); e(f'v_sin_f32 v{T2S+4*w2+r}, v9')
        for f in range(4*r, 4*r+4): e(f'ds_read_b128 {vr(F64+4*f)}, v4 offset:{8192+1024*f}')
    st()
    e(f's_waitcnt vmcnt({12+nz})')
    e('v_mov_b32 v9, 0x3727c5ac'); e('s_mov_b32 s9, 0x3a800000')
    for l in range(8): e(f'v_fma_f32 v{RS+l}, v{RS+l}, s9, v9')
    for l in range(8): e(f'v_rsq_f32 v{RS+l}, v{RS+l}')
    for l in range(8): e(f'v_mul_f32 v{RS+l}, 0x3a000000, v{RS+l}')
    for l in range(8): e(f'v_mul_f32 v{RS0+l}, s31, v{RS+l}')
    def scale(l, cc):
        kap, r = l >> 2, l & 3
        x = X + 2*l + cc
        return [f'v_lshlrev_b32 v8, 16, v{x}', f'v_and_b32 v9, 0xffff0000, v{x}',
                f'v_mul_f32 v8, v8, v{(RS0 if cc == 0 else RS)+l}', f'v_mul_f32 v9, v9, v{RS+l}',
                f'v_cvt_pk_bf16_f32 v{AF + 8*cc + 4*kap + r}, v8, v9']
    for l in range(8):
        e(f's_waitcnt vmcnt({4+nz+7-l})')
        for x in scale(l, 0): e(x)
    e('s_waitcnt lgkmcnt(0)')
    st()
    def d1(cc, po, nu): return D1 + 16*cc + 8*po + 4*nu
    def s1_mf(cc):
        out = []
        for nu in range(2):
            for kap in range(2):
                for po in range(2):
                    out.append(mfma(d1(cc, po, nu), AF + 8*cc + 4*kap, F32 + 4*(po*4 + nu*2 + kap), '0' if kap == 0 else None))
        return out
    def tw1(cc, nu):
        g = cc*2 + nu; out = []
        P = 176 + 8*g
        for r in range(4):
            yr = d1(cc, 0, nu) + r; yi = d1(cc, 1, nu) + r; c = T1C + 4*nu + r; s = T1S + 4*nu + r
            out += [f'v_mul_f32 v8, v{yr}, v{c}', f'v_mul_f32 v9, v{yi}, v{c}',
                    f'v_fmac_f32 v8, v{yi}, v{s}', f'v_fma_f32 v9, -v{yr}, v{s}, v9',
                    f'v_cvt_pk_bf16_f32 v{yr}, v8, v9', f'v_cvt_pk_bf16_f32 v{yi}, v9, -v8']
        out += [f'ds_write_b128 v14, {vr(d1(cc,0,nu))} offset:{g*8192}', f'ds_write_b128 v14, {vr(d1(cc,1,nu))} offset:{g*8192+4096}']
        return out
    sc1 = sum([scale(l, 1) for l in range(8)], [])
    interleave(e, s1_mf(0), sc1, 5)
    interleave(e, s1_mf(1), tw1(0, 0) + tw1(0, 1), 2)
    for x in tw1(1, 0) + tw1(1, 1): e(x)
    e('s_waitcnt lgkmcnt(0)'); e('s_barrier')
    st()
    for w in range(4):
        for ver in range(2): e(f'ds_read_b128 {vr(BF + 16*ver + 4*w)}, v15 offset:{4096*ver + 1024*w}')
    def d2(po, mu): return D2 + 16*po + 4*mu
    def s2_mf(mu):
        return [mfma(d2(po, mu), F64 + 4*(mu*4 + w), BF + 16*po + 4*w, '0' if w == 0 else None) for w in range(4) for po in range(2)]
    def wmul(mu):
        out = []
        for r in range(4):
            dr = d2(0, mu) + r; di = d2(1, mu) + r; w = WP + 4*mu + r
            out += [f'v_lshlrev_b32 v10, 16, v{w}', f'v_and_b32 v11, 0xffff0000, v{w}',
                    f'v_mul_f32 v8, v{dr}, v10', f'v_mul_f32 v9, v{dr}, v11',
                    f'v_fma_f32 v8, -v{di}, v11, v8', f'v_fmac_f32 v9, v{di}, v10',
                    f'v_cvt_pk_bf16_f32 v{dr}, v8, -v9', f'v_cvt_pk_bf16_f32 v{di}, v9, v8']
        return out
    e(f's_waitcnt vmcnt({nz})')
    m0 = s2_mf(0)
    for i, x in enumerate(m0):
        if i % 2 == 0: e(f's_waitcnt lgkmcnt({6 - i})')
        e(x)
    interleave(e, s2_mf(1)[:3], [], 0)
    interleave(e, s2_mf(1)[3:] + s2_mf(2) + s2_mf(3), wmul(0) + wmul(1), 3)
    def e1(po, w2): return E1 + 16*po + 4*w2
    def i1_mf(w2, mus):
        return [mfma(e1(po, w2), d2(po, mu), F64 + 4*(w2*4 + mu), '0' if mu == 0 else None) for mu in mus for po in range(2)]
    interleave(e, sum([i1_mf(w2, [0, 1]) for w2 in range(4)], []), wmul(2) + wmul(3), 4)
    def tw2(w2):
        out = []
        for r in range(4):
            er = e1(0, w2) + r; ei = e1(1, w2) + r; c = T2C + 4*w2 + r; s = T2S + 4*w2 + r
            out += [f'v_mul_f32 v8, v{er}, v{c}', f'v_mul_f32 v9, v{ei}, v{c}',
                    f'v_fma_f32 v8, -v{ei}, v{s}, v8', f'v_fmac_f32 v9, v{er}, v{s}',
                    f'v_cvt_pk_bf16_f32 v{er}, v9, v8']
        out += [f'ds_write_b128 v15, {vr(e1(0, w2))} offset:{1024*w2}']
        return out
    interleave(e, i1_mf(0, [2, 3]) + i1_mf(1, [2, 3])[:3], [], 0)
    interleave(e, i1_mf(1, [2, 3])[3:] + i1_mf(2, [2, 3]) + i1_mf(3, [2, 3]), tw2(0) + tw2(1), 3)
    for x in tw2(2) + tw2(3): e(x)
    def yy(cc, part, mu): return Y + 16*cc + 8*part + 4*mu
    unp = []
    for cc in range(2):
        for l in range(8):
            x = X + 2*l + cc
            dre = (yy(cc, 0, l >> 2) + (l & 3)) if cc == 1 else (96 + l)
            unp += [f'v_lshlrev_b32 v{dre}, 16, v{x}', f'v_and_b32 v{yy(cc,1,l>>2)+(l&3)}, 0xffff0000, v{x}']
    for x in unp[:16]: e(x)
    e('s_waitcnt lgkmcnt(0)'); e('s_barrier')
    st()
    for g in range(4): e(f'ds_read_b128 {vr(CF + 4*g)}, v14 offset:{8192*g}')
    for x in unp[16:]: e(x)
    for cc in range(2):
        for nu in range(2):
            e(f's_waitcnt lgkmcnt({3 - (cc*2+nu)})')
            for mu in range(2):
                for part in range(2):
                    po = 1 - part
                    c0 = '0' if (cc == 0 and part == 0 and nu == 0) else None
                    e(mfma(yy(cc, part, mu), F32 + 4*(po*4 + mu*2 + nu), CF + 4*(cc*2+nu), c0))
    for l in range(8):
        y = yy(0, 0, l >> 2) + (l & 3)
        e(f'v_fma_f32 v{y}, v{y}, s31, v{96+l}')
        e(f'v_cvt_pk_bf16_f32 v{X+2*l}, v{y}, v{yy(0,1,l>>2)+(l&3)}')
    for l in range(8):
        e(f'v_cvt_pk_bf16_f32 v{X+2*l+1}, v{yy(1,0,l>>2)+(l&3)}, v{yy(1,1,l>>2)+(l&3)}')
        e(f'buffer_store_dwordx2 {vr(X+2*l, 2)}, v5, s[36:39], s{20+l} offen')
    st()
    st.finish(16, 's10', wg)

def gen_k2(name, **kw):
    k = Kern(name, vgpr=256, sgpr=100)
    k.e('s_cmp_ge_u32 s2, 256'); k.e(f's_cbranch_scc1 {k.ln("end")}')
    emit_k2(k, **kw)
    k.lab('end'); k.e('s_endpgm')
    k.lds = K2_LDS
    return k

if __name__ == '__main__':
    from tables import k2_tables
    ka = gen_k2('k2a_kernel', xin=XA_OFF, xout=XB_OFF, st_off=ST_OFF)
    kb = gen_k2('k2b_kernel', xin=XA_OFF, xout=XB_OFF, st_off=ST_OFF, stamp=0)
    write_file('k2test.s', [(ka.name, 256, 256, ka.lds)]*6 + [(kb.name, 256, 256, kb.lds)]*3, [ka, kb], table_text('tab_k2', k2_tables()))
```

```python
import numpy as np
def bf16r(a):
    a = np.ascontiguousarray(a, dtype=np.float32); u = a.view(np.uint32)
    return (((u + 0x7FFF + ((u >> 16) & 1)) >> 16) << 16).astype(np.uint32).view(np.float32)
def bf16bits(a):
    a = np.ascontiguousarray(a, dtype=np.float32); u = a.view(np.uint32)
    return ((u + 0x7FFF + ((u >> 16) & 1)) >> 16).astype(np.uint16)

def F1mat():
    n1 = np.arange(64)[:, None]; c = np.arange(32)[None, :]
    F = np.zeros((64, 32, 2))
    F[:, :, 0] = np.cos(2*np.pi*n1*c/64) / 8
    F[:, :, 1] = -np.sin(2*np.pi*n1*c/64) / 8
    F[:, 0, 0] = 1/8; F[:, 0, 1] = (-1.0)**np.arange(64) / 8
    return F
def M2mat():
    M = np.zeros((32, 16, 2, 16, 2)); n2 = np.arange(16); s = np.sqrt(2)/4
    for c in range(32):
        for k2 in range(16):
            if c >= 1:
                th = 2*np.pi*n2*(c + 64*k2)/1024; sg = 1.0 if k2 < 8 else -1.0
                M[c, k2, 0, :, 0] = s*np.cos(th); M[c, k2, 0, :, 1] = s*np.sin(th)
                M[c, k2, 1, :, 0] = -sg*s*np.sin(th); M[c, k2, 1, :, 1] = sg*s*np.cos(th)
            elif k2 == 0:
                M[c, k2, 0, :, 0] = 0.25; M[c, k2, 1, :, 0] = 0.25*(-1.0)**n2
            elif k2 < 8:
                th = 2*np.pi*n2*(64*k2)/1024
                M[c, k2, 0, :, 0] = s*np.cos(th); M[c, k2, 1, :, 0] = -s*np.sin(th)
            else:
                th = 2*np.pi*n2*(32 + 64*(k2-8))/1024
                M[c, k2, 0, :, 1] = s*np.cos(th); M[c, k2, 1, :, 1] = -s*np.sin(th)
    return M
def kf_of_col():
    kf = np.zeros(512, np.int64)
    for c in range(32):
        for k2 in range(16):
            if c >= 1: v = c + 64*k2 if k2 < 8 else 1024 - c - 64*k2
            elif k2 == 0: v = 512
            elif k2 < 8: v = 64*k2
            else: v = 32 + 64*(k2-8)
            kf[16*c + k2] = v
    return kf
def Qmat():
    F = F1mat(); M = M2mat()
    Q = np.einsum('acp,ckonp->ancko', F, M)
    return Q.reshape(1024, 1024)
def fwd_rows(v, rnd=True):
    r = bf16r if rnd else (lambda a: a)
    F = r(F1mat()); M = r(M2mat())
    Y = r(np.einsum('ran,acp->rcnp', v.reshape(-1, 64, 16).astype(np.float32), F))
    X = np.einsum('rcnp,ckonp->rcko', Y, M)
    return X.reshape(-1, 1024).astype(np.float32)
def inv_rows(x, rnd=True):
    r = bf16r if rnd else (lambda a: a)
    F = r(F1mat()); M = r(M2mat())
    E = r(np.einsum('rcko,ckonp->rcnp', x.reshape(-1, 32, 16, 2).astype(np.float32), M))
    v = np.einsum('rcnp,acp->ran', E, F)
    return v.reshape(-1, 1024).astype(np.float32)
def col_layer(xt, wr, wi):
    ss = (xt[:, 1:].astype(np.float64)**2).sum(1); rstd = 1/np.sqrt(ss/1024 + 1e-5)
    u = (xt[:, 0::2] + 1j*xt[:, 1::2]) * rstd[:, None]
    u[:, 0] = 1j*u[:, 0].imag
    W = (wr + 1j*wi)[:, kf_of_col()]
    z = np.fft.ifft(np.fft.fft(u, axis=0) * W, axis=0)
    z[:, 0] = 1j*z[:, 0].imag
    out = xt.astype(np.float64).copy(); out[:, 0::2] += z.real; out[:, 1::2] += z.imag
    return out.astype(np.float32)
def silu(x): return x/(1+np.exp(-x))
def full_model(x, wr, wi, w1, w2):
    xt = bf16r(fwd_rows(x))
    w1t = bf16r(fwd_rows(np.ascontiguousarray(w1.T))); w1t[:, 0] = 0
    w2t = bf16r(fwd_rows(w2))
    for _ in range(2):
        xt = bf16r(col_layer(xt, wr, wi))
        rstd = 1/np.sqrt((xt[:, 1:]**2).sum(1)/1024 + 1e-5)
        h = bf16r(silu((xt @ w1t.T) * rstd[:, None]))
        xt = bf16r(xt + h @ w2t)
    return bf16r(inv_rows(xt))
if __name__ == '__main__':
    Q = Qmat()
    print('orth err', np.abs(Q @ Q.T - np.eye(1024)).max())
    rng = np.random.default_rng(0)
    v = rng.standard_normal((4, 1024))
    X = np.fft.rfft(v, axis=1); xt = v @ Q; kf = kf_of_col()
    c = xt[:, 0::2] + 1j*xt[:, 1::2]
    print('fft err', np.abs(c[:, 1:] - X[:, kf[1:]]*np.sqrt(2/1024)).max(), np.abs(c[:,0].real - X[:,0].real/32).max(), np.abs(c[:,0].imag - X[:,512].real/32).max())
    print(sorted(kf) == list(range(1, 513)))
    x = bf16r(rng.standard_normal((2048,1024))*0.05); wr = bf16r(rng.standard_normal((2048,513))*0.008); wi = bf16r(rng.standard_normal((2048,513))*0.008)
    w1 = bf16r(rng.standard_normal((1024,3584))*0.0125); w2 = bf16r(rng.standard_normal((3584,1024))*0.1/60)
    def ln(a): return (a - a.mean(1, keepdims=True))/np.sqrt(a.var(1, keepdims=True) + 1e-5)
    r = x.astype(np.float64)
    for _ in range(2):
        r = r + np.fft.irfft2(np.fft.rfft2(ln(r)) * (wr + 1j*wi), s=(2048,1024))
        r = r + silu(ln(r) @ w1) @ w2
    o = full_model(x, wr, wi, w1, w2)
    print('e2e maxerr', np.abs(o - r).max(), 'rms', np.sqrt(((o-r)**2).mean()), np.abs(r).max())
```

```python
import numpy as np
from model import F1mat, M2mat, bf16bits
I = np.arange(16)[None, :, None]; Qq = np.arange(4)[:, None, None]; E = np.arange(8)[None, None, :]
def frag(fn):
    a = np.zeros((4, 16, 8))
    for q in range(4):
        for i in range(16):
            for e in range(8): a[q, i, e] = fn(i, q, e)
    return bf16bits(a).tobytes()
def k2_tables():
    out = b''
    for po in range(2):
        for a in range(2):
            for b in range(2):
                def f(i, q, e):
                    th = 2*np.pi*(16*a+i)*(16*b+4*q+(e >> 1))/32
                    if po == 0: return np.cos(th) if e & 1 == 0 else np.sin(th)
                    return -np.sin(th) if e & 1 == 0 else np.cos(th)
                out += frag(f)
    for a in range(4):
        for b in range(4):
            def f(i, q, e):
                th = 2*np.pi*(16*a+i)*(16*b+4*q+(e >> 1))/64
                return np.cos(th) if e & 1 == 0 else np.sin(th)
            out += frag(f)
    return out
def n1map(kap, q, e): return 32*kap + 16*(e >> 2) + 4*q + (e & 3)
def t_tables():
    F = F1mat(); M = M2mat(); out = b''
    for nu in range(4):
        ch, part = nu >> 1, nu & 1
        for kap in range(2): out += frag(lambda i, q, e: F[n1map(kap, q, e), 16*ch + i, part])
    for mu in range(4):
        for kap in range(2): out += frag(lambda i, q, e: F[n1map(kap, q, e), 8*mu + (i >> 1), i & 1])
    for c in range(32):
        for T in range(2):
            def f(i, q, e):
                jl = 8*(i >> 2) + 4*T + (i & 3)
                return M[c, jl >> 1, jl & 1, 4*q + (e & 3), e >> 2]
            out += frag(f)
    return out
def i_tables():
    F = F1mat(); M = M2mat(); out = b''
    for w in range(4):
        for kap in range(2): out += frag(lambda i, q, e: F[16*w + i, 16*kap + 4*q + (e >> 1), e & 1])
    for c in range(32):
        for T in range(2):
            def f(i, q, e):
                jl = 8*q + e
                return M[c, jl >> 1, jl & 1, 8*T + (i >> 1), i & 1]
            out += frag(f)
    return out
```

```python
from asmlib import *
from common import *
from k2 import interleave, mfma, Stamps
SP = 2064
T_LDS = 32*SP + 512

def emit_t(k, kind, wg, tag, stamp=None, xout=XA_OFF, st_off=ST_OFF):
    e = k.e; st = Stamps(k, stamp)
    F1 = 16; M2 = 48; IN = 112; ACC = 176
    argoff = {'x': 0, 'w2': 40, 'w1': 32}[kind]
    nbytes = {'x': 2048*1024*2, 'w2': 3584*1024*2, 'w1': 3584*1024*2}[kind]
    e('s_load_dwordx2 s[4:5], s[0:1], 64'); e(f's_load_dwordx2 s[6:7], s[0:1], {argoff}')
    st()
    k.srd_table(12, 'tab_t', 81920)
    e('v_lshrrev_b32 v7, 6, v0'); e('v_and_b32 v1, 63, v0'); e('v_and_b32 v2, 15, v0'); e('v_bfe_u32 v3, v0, 4, 2')
    e('v_readfirstlane_b32 s10, v7'); e('v_lshlrev_b32 v4, 4, v1')
    e('s_lshl_b32 s11, s10, 14')
    if kind == 'w1':
        e('v_lshrrev_b32 v5, 2, v1'); e('s_mov_b32 s9, 114688'); e('v_mul_lo_u32 v5, v5, s9'); e('v_and_b32 v6, 3, v1'); e('v_lshl_add_u32 v5, v6, 4, v5')
        e('s_mul_i32 s20, s10, 28672'); e(f's_lshl_b32 s9, {wg}, 6'); e('s_add_u32 s20, s20, s9')
    else:
        e(f's_lshl_b32 s20, {wg}, 16'); e('s_add_u32 s20, s20, s11')
    e('s_waitcnt lgkmcnt(0)')
    k.srd(16, 4, WS_BYTES); k.srd(24, 6, nbytes)
    if kind == 'w1':
        for n2l in range(4):
            for a in range(4):
                e(f's_add_u32 m0, s11, {(n2l*4+a)*1024}'); e(f's_add_u32 s21, s20, {(256*a + n2l)*7168}')
                e('buffer_load_dwordx4 v5, s[24:27], s21 offen lds')
    else:
        for g in range(4):
            e(f's_add_u32 m0, s11, {4096*g}'); e(f's_add_u32 s21, s20, {4096*g}')
            for j in range(4): e(f'buffer_load_dwordx4 v4, s[24:27], s21 offen offset:{1024*j} lds')
    fo = 8192 if kind == 'w1' else 0
    e(f's_mov_b32 s22, {fo}'); e(f's_mov_b32 s23, {fo+4096}')
    for f in range(8): e(f'buffer_load_dwordx4 {vr(F1+4*f)}, v4, s[12:15], s{22 + (f >> 2)} offen offset:{1024*(f & 3)}')
    for g in range(4):
        e(f's_add_u32 s21, s11, {16384 + 4096*g}')
        for j in range(4): e(f'buffer_load_dwordx4 {vr(M2+16*g+4*j)}, v4, s[12:15], s21 offen offset:{1024*j}')
    if kind == 'w1':
        e('v_add_u32 v8, s11, v4')
        e(f's_mov_b32 s9, {2*SP}'); e('v_mul_lo_u32 v9, v3, s9'); e('v_lshl_add_u32 v9, v2, 4, v9'); e('s_lshl_b32 s9, s10, 8'); e('v_add_u32 v9, s9, v9')
    else:
        e('v_lshl_add_u32 v8, v1, 3, s11')
        e(f's_mov_b32 s9, {SP}'); e('v_mul_lo_u32 v9, v2, s9'); e('v_lshl_add_u32 v9, v3, 8, v9')
        if kind == 'x':
            e('s_lshr_b32 s9, s10, 1'); e('s_lshl_b32 s9, s9, 10'); e('s_and_b32 s8, s10, 1'); e('s_lshl_b32 s8, s8, 7'); e('s_add_u32 s9, s9, s8')
        else:
            e('s_lshl_b32 s9, s10, 6')
        e('v_add_u32 v9, s9, v9')
    e(f's_mul_i32 s9, s10, {8*SP}'); e('v_add_u32 v10, s9, v4')
    e('v_mov_b32 v11, -1'); e('v_mov_b32 v12, 0xffff0000'); e('v_cmp_gt_u32 vcc, 16, v0'); e('v_cndmask_b32 v11, v11, v12, vcc')
    e('v_mov_b32 v12, 1.0'); e('v_cndmask_b32 v12, v12, 0, vcc')
    for g in range(4):
        e(f's_waitcnt vmcnt({24 + 12 - 4*g})')
        if kind == 'w1':
            n2l = g
            for u in range(2):
                for kr in range(4):
                    e(f'ds_read_b64_tr_b16 {vr(IN + 16*n2l + 8*u + 2*kr, 2)}, v8 offset:{n2l*4096 + kr*1024 + 8*u}')
        else:
            for a in (2*g, 2*g+1):
                for kr in range(4):
                    e(f'ds_read_b64_tr_b16 {vr(IN + 8*a + 2*kr, 2)}, v8 offset:{a*2048 + kr*512}')
    e('s_waitcnt lgkmcnt(0)'); e('s_barrier')
    st()
    e('s_waitcnt vmcnt(16)')
    if kind == 'w1':
        def mf(u, mu):
            return [mfma(ACC + 16*mu + 4*n2l, F1 + 4*(mu*2 + kap), IN + 16*n2l + 8*u + 4*kap, '0' if kap == 0 else None) for kap in range(2) for n2l in range(4)]
        def pk(u, mu):
            out = []
            for cs in range(2):
                d = 240 + 4*((mu*2+cs) % 4)
                for part in range(2):
                    for h in range(2):
                        a0 = ACC + 16*mu + 8*h + 2*cs + part
                        out.append(f'v_cvt_pk_bf16_f32 v{d + 2*part + h}, v{a0}, v{a0+4}')
                out.append(f'ds_write_b128 v9, {vr(d)} offset:{(8*mu+cs)*SP + u*1024}')
            return out
        seq = [(u, mu) for u in range(2) for mu in range(4)]
        for n, (u, mu) in enumerate(seq):
            m = mf(u, mu)
            if n == 0: interleave(e, m, [], 0)
            else:
                interleave(e, m[:3], [], 0); interleave(e, m[3:], pk(*seq[n-1]), 2)
        for x in pk(*seq[-1]): e(x)
    else:
        def mf(a):
            b = ACC + 16*(a % 4)
            return [mfma(b + 4*nu, IN + 8*a + 4*kap, F1 + 4*(nu*2 + kap), '0' if kap == 0 else None) for kap in range(2) for nu in range(4)]
        def pk(a):
            b = ACC + 16*(a % 4); out = []
            apart = a*16 if kind == 'x' else (a >> 2)*1024 + (a & 3)*16
            for ch in range(2):
                d = 240 + 4*((a*2+ch) % 4)
                for j in range(4): out.append(f'v_cvt_pk_bf16_f32 v{d+j}, v{b + 8*ch + 2*j}, v{b + 8*ch + 2*j + 1}')
                out.append(f'ds_write_b128 v9, {vr(d)} offset:{ch*16*SP + apart}')
            return out
        for a in range(8):
            m = mf(a)
            if a == 0: interleave(e, m, [], 0)
            else:
                interleave(e, m[:3], [], 0); interleave(e, m[3:], pk(a-1), 2)
        for x in pk(7): e(x)
    e('s_waitcnt lgkmcnt(0)'); e('s_barrier')
    st()
    for cl in range(8):
        for u in range(2): e(f'ds_read_b128 {vr(IN + 8*cl + 4*u)}, v10 offset:{cl*SP + u*1024}')
    if kind == 'x':
        e('s_lshl_b32 s30, s10, 20'); e(f's_lshl_b32 s9, {wg}, 11'); e('s_add_u32 s30, s30, s9');
        if xout: e(f's_add_u32 s30, s30, {xout}')
        cstep = 131072
        e('v_mov_b32 v13, 0'); e('v_mov_b32 v14, 0')
    elif kind == 'w2':
        e(f's_lshl_b32 s30, {wg}, 16'); e('s_lshl_b32 s9, s10, 14'); e('s_add_u32 s30, s30, s9'); e(f's_add_u32 s30, s30, {W2_OFF}')
        cstep = 2048
    else:
        e(f's_mul_hi_u32 s8, {wg}, {(1 << 32)//7 + 1}' if False else f's_mul_i32 s8, {wg}, 9363'); e('s_lshr_b32 s8, s8, 16')
        e('s_mul_i32 s9, s8, 7'); e(f's_sub_u32 s9, {wg}, s9')
        e('s_lshl_b32 s30, s9, 1'); e('s_add_u32 s31, s30, 1')
        e('s_cmp_gt_u32 s9, 3'); e('s_cselect_b32 s32, 1, 0'); e('s_sub_u32 s30, s30, s32'); e('s_sub_u32 s31, s31, s32')
        e('s_cmp_eq_u32 s9, 3'); e('s_cselect_b32 s31, 13, s31')
        e('s_mul_i32 s8, s8, 14'); e(f's_mul_i32 s9, s10, {8*224}'); e('s_add_u32 s8, s8, s9')
        e('s_add_u32 s30, s30, s8'); e('s_add_u32 s31, s31, s8'); e('s_lshl_b32 s30, s30, 10'); e('s_lshl_b32 s31, s31, 10')
        e(f's_add_u32 s30, s30, {W1_OFF}'); e(f's_add_u32 s31, s31, {W1_OFF}')
        cstep = 224*1024
    e('s_waitcnt vmcnt(0)')
    def mf2(cl):
        b = ACC + 16*(cl % 4); out = []
        for u in range(2):
            for T in range(2):
                y = IN + 8*cl + 4*u; m = M2 + 8*cl + 4*T
                if kind == 'w2': out.append(mfma(b + 8*T + 4*u, y, m, '0'))
                else: out.append(mfma(b + 8*u + 4*T, m, y, '0'))
        return out
    def fin2(cl):
        b = ACC + 16*(cl % 4); out = []
        for z in range(2):
            d = 240 + 4*((cl*2+z) % 4)
            for j in range(4): out.append(f'v_cvt_pk_bf16_f32 v{d+j}, v{b + 8*z + 2*j}, v{b + 8*z + 2*j + 1}')
            if kind == 'w1' and cl == 0: out.append(f'v_and_b32 v{d}, v{d}, v11')
            if kind == 'w1': out.append(f'buffer_store_dwordx4 {vr(d)}, v4, s[16:19], s{30+z} offen')
            else: out.append(f'buffer_store_dwordx4 {vr(d)}, v4, s[16:19], s30 offen offset:{1024*z}')
            if kind == 'x':
                for j in range(8):
                    if cl == 0 and j == 0: out.append(f'v_mul_f32 v{b+8*z}, v{b+8*z}, v12')
                    out.append(f'v_fmac_f32 v{13+z}, v{b+8*z+j}, v{b+8*z+j}')
        out.append(f's_add_u32 s30, s30, {cstep}')
        if kind == 'w1': out.append(f's_add_u32 s31, s31, {cstep}')
        return out
    for cl in range(8):
        e(f's_waitcnt lgkmcnt({14 - 2*cl})')
        if cl < 2: interleave(e, mf2(cl), [], 0)
        else: interleave(e, mf2(cl), fin2(cl-2), 3)
    for x in fin2(6) + fin2(7): e(x)
    if kind == 'x':
        e('v_permlane32_swap_b32 v13, v14'); e('v_add_f32 v13, v13, v14'); e('v_mov_b32 v14, v13')
        e('v_permlane16_swap_b32 v13, v14'); e('v_add_f32 v13, v13, v14')
        e('v_lshrrev_b32 v14, 5, v1'); e('v_lshl_add_u32 v14, v14, 4, v2'); e('v_lshlrev_b32 v14, 2, v14')
        e('s_lshl_b32 s9, s10, 7'); e(f's_add_u32 s9, s9, {32*SP}'); e('v_add_u32 v15, s9, v14')
        e('ds_write_b32 v15, v13'); e('s_waitcnt lgkmcnt(0)'); e('s_barrier')
        e('s_cmp_lg_u32 s10, 0'); e(f's_cbranch_scc1 {k.ln(tag+"_done")}')
        for w in range(1, 4): e(f'ds_read_b32 v{20+w}, v15 offset:{128*w}')
        e(f's_lshl_b32 s9, {wg}, 7'); e(f's_add_u32 s9, s9, {st_off}')
        e('s_waitcnt lgkmcnt(0)')
        e('v_add_f32 v13, v13, v21'); e('v_add_f32 v22, v22, v23'); e('v_add_f32 v13, v13, v22')
        e('buffer_store_dword v13, v14, s[16:19], s9 offen')
        k.lab(tag + '_done')
    st()
    st.finish(16, 's10', wg)

def emit_wprep(k, wg):
    e = k.e
    e('s_load_dwordx2 s[4:5], s[0:1], 64'); e('s_load_dwordx4 s[24:27], s[0:1], 8')
    e('v_lshrrev_b32 v7, 6, v0'); e('v_and_b32 v1, 63, v0')
    e('v_readfirstlane_b32 s10, v7')
    e(f's_and_b32 s6, {wg}, 7'); e(f's_lshr_b32 s7, {wg}, 3')
    e('s_lshl_b32 s8, s6, 6'); e('v_add_u32 v2, s8, v1'); e('v_mov_b32 v3, 0x200'); e('v_cmp_eq_u32 vcc, 0, v2'); e('v_cndmask_b32 v2, v2, v3, vcc'); e('v_lshlrev_b32 v2, 1, v2')
    e('v_lshlrev_b32 v3, 4, v1'); e('v_add_u32 v3, s6, v3')
    e('s_sub_u32 s8, 1039, s6'); e('v_lshlrev_b32 v5, 4, v1'); e('v_sub_u32 v5, s8, v5')
    e('v_cmp_lt_u32 vcc, 32, v1'); e('v_cndmask_b32 v3, v3, v5, vcc')
    e('s_add_u32 s8, s6, 8'); e('v_mov_b32 v5, s8'); e('v_cmp_eq_u32 vcc, 32, v1'); e('v_cndmask_b32 v3, v3, v5, vcc')
    e('v_lshlrev_b32 v3, 13, v3')
    e('s_lshr_b32 s8, s7, 4'); e('s_lshl_b32 s8, s8, 4'); e('s_lshl_b32 s9, s10, 2'); e('s_add_u32 s8, s8, s9'); e('s_and_b32 s9, s7, 15'); e('s_lshl_b32 s9, s9, 7'); e('s_add_u32 s8, s8, s9')
    e('s_mul_i32 s20, s8, 1026')
    for r in range(1, 4): e(f's_add_u32 s{20+r}, s20, {32832*r}')
    e('s_lshl_b32 s30, s7, 8'); e('s_lshl_b32 s9, s10, 6'); e('s_add_u32 s30, s30, s9'); e(f's_add_u32 s30, s30, {WP_OFF}')
    e('s_waitcnt lgkmcnt(0)')
    k.srd(16, 4, WS_BYTES); k.srd(32, 24, 2048*513*2); k.srd(36, 26, 2048*513*2)
    for il in range(4):
        for r in range(4):
            e(f'buffer_load_ushort v{16+4*il+r}, v2, s[32:35], s{20+r} offen offset:{1026*il}')
            e(f'buffer_load_ushort v{32+4*il+r}, v2, s[36:39], s{20+r} offen offset:{1026*il}')
    for il in range(4):
        e(f's_waitcnt vmcnt({24 - 8*il + il})')
        for r in range(4): e(f'v_lshl_or_b32 v{16+4*il+r}, v{32+4*il+r}, 16, v{16+4*il+r}')
        e(f'buffer_store_dwordx4 {vr(16+4*il)}, v3, s[16:19], s30 offen offset:{16*il}')

K3_LDS = 32768
def emit_k3(k, wg, xin, stamp=None):
    e = k.e; st = Stamps(k, stamp)
    FI = 16; XF = 24; MT = 56; ACC = 120; EF = 184
    e('s_load_dwordx2 s[4:5], s[0:1], 64'); e('s_load_dwordx2 s[6:7], s[0:1], 48')
    st()
    k.srd_table(12, 'tab_i', 73728)
    e('v_lshrrev_b32 v7, 6, v0'); e('v_and_b32 v1, 63, v0'); e('v_and_b32 v2, 15, v0'); e('v_bfe_u32 v3, v0, 4, 2')
    e('v_readfirstlane_b32 s10, v7'); e('v_lshlrev_b32 v4, 4, v1')
    e('s_lshl_b32 s11, s10, 14'); e('s_add_u32 s11, s11, 8192')
    e('s_lshl_b32 s20, s10, 20'); e(f's_lshl_b32 s9, {wg}, 10'); e('s_add_u32 s20, s20, s9')
    if xin: e(f's_add_u32 s20, s20, {xin}')
    e('s_waitcnt lgkmcnt(0)')
    k.srd(16, 4, WS_BYTES); k.srd(24, 6, 2048*1024*2)
    for g in range(4):
        for h in range(2):
            e(f'buffer_load_dwordx4 {vr(XF + 8*g + 4*h)}, v4, s[16:19], s20 offen'); e('s_add_u32 s20, s20, 131072')
        for j in range(4): e(f'buffer_load_dwordx4 {vr(MT+16*g+4*j)}, v4, s[12:15], s11 offen offset:{1024*j}')
        e('s_add_u32 s11, s11, 4096')
    e('s_lshl_b32 s9, s10, 11')
    for kap in range(2): e(f'buffer_load_dwordx4 {vr(FI+4*kap)}, v4, s[12:15], s9 offen offset:{1024*kap}')
    e('v_lshlrev_b32 v9, 12, v3'); e('v_lshl_add_u32 v9, v2, 4, v9'); e('s_lshl_b32 s9, s10, 9'); e('v_add_u32 v9, s9, v9')
    e('v_lshlrev_b32 v10, 13, v3'); e('v_lshl_add_u32 v10, v2, 5, v10')
    e(f's_lshl_b32 s30, {wg}, 15'); e('s_add_u32 s30, s30, s9'); e('s_add_u32 s31, s30, 4096')
    for g2 in range(2):
        for g in (2*g2, 2*g2+1):
            e(f's_waitcnt vmcnt({2 + 6*(3-g)})')
            for h in range(2):
                cl = 2*g + h
                for T in range(2): e(mfma(ACC + 8*cl + 4*T, MT + 8*cl + 4*T, XF + 4*cl, '0'))
    for g in range(2):
        for T in range(2):
            for ns in range(2):
                d = EF + 4*((g*4 + T*2 + ns))
                for c4 in range(4):
                    a = ACC + 8*(4*g + c4) + 4*T + 2*ns
                    e(f'v_cvt_pk_bf16_f32 v{d+c4}, v{a}, v{a+1}')
                e(f'ds_write_b128 v9, {vr(d)} offset:{(8*T+ns)*2048 + g*256}')
    e('s_waitcnt lgkmcnt(0)'); e('s_barrier')
    st()
    e('s_waitcnt vmcnt(0)')
    def fr(n): return (24 + 4*n) if n < 24 else (EF + 4*(n - 24))
    for n in range(8): e(f'ds_read_b128 {vr(fr(n))}, v4 offset:{1024*n}')
    for n in range(32):
        if n + 8 < 32: e(f'ds_read_b128 {vr(fr(n+8))}, v4 offset:{1024*(n+8)}')
        e(f's_waitcnt lgkmcnt({min(8, 31-n)})')
        n2, kap = n >> 1, n & 1
        e(mfma(ACC + 4*n2, fr(n), FI + 4*kap, '0' if kap == 0 else None))
    for r in range(4):
        for h in range(2):
            d = 24 + 4*(r*2 + h)
            for m in range(4):
                n2 = 8*h + 2*m
                e(f'v_cvt_pk_bf16_f32 v{d+m}, v{ACC + 4*n2 + r}, v{ACC + 4*(n2+1) + r}')
            e(f'buffer_store_dwordx4 {vr(d)}, v10, s[24:27], s{30 + (r >> 1)} offen offset:{2048*(r & 1) + 16*h}')
    st()
    st.finish(16, 's10', wg)

def gen_multi(name, progs, vgpr=256):
    k = Kern(name, vgpr=vgpr, sgpr=100)
    tot = sum(p[0] for p in progs)
    k.e(f's_cmp_ge_u32 s2, {tot}'); k.e(f's_cbranch_scc1 {k.ln("end")}')
    base = 0
    for n, (cnt, fn, lds) in enumerate(progs):
        if n < len(progs) - 1:
            k.e(f's_cmp_ge_u32 s2, {base+cnt}'); k.e(f's_cbranch_scc1 {k.ln(f"p{n+1}")}')
        k.e(f's_sub_u32 s3, s2, {base}')
        fn(k, 's3', f'p{n}')
        k.e('s_endpgm')
        if n < len(progs) - 1: k.lab(f'p{n+1}')
        base += cnt
    k.lab('end'); k.e('s_endpgm')
    k.lds = max(p[2] for p in progs); k.grid = tot
    return k

if __name__ == '__main__':
    from tables import *
    ks = [gen_multi('tx_kernel', [(64, lambda k, w, t: emit_t(k, 'x', w, t, stamp=0), T_LDS)]),
          gen_multi('tw1_kernel', [(112, lambda k, w, t: emit_t(k, 'w1', w, t, stamp=1), T_LDS)]),
          gen_multi('tw2_kernel', [(112, lambda k, w, t: emit_t(k, 'w2', w, t, stamp=2), T_LDS)]),
          gen_multi('wp_kernel', [(256, lambda k, w, t: emit_wprep(k, w), 0)]),
          gen_multi('k3_kernel', [(128, lambda k, w, t: emit_k3(k, w, XA_OFF, stamp=3), K3_LDS)]),
          gen_multi('k1_kernel', [(64, lambda k, w, t: emit_t(k, 'x', w, t), T_LDS), (112, lambda k, w, t: emit_t(k, 'w1', w, t), T_LDS),
                                  (112, lambda k, w, t: emit_t(k, 'w2', w, t), T_LDS), (256, lambda k, w, t: emit_wprep(k, w), 0)]),
          ]
    L = [(kk.name, kk.grid, 256, kk.lds) for kk in ks]
    write_file('tktest.s', [L[5]] + L[:5] + L[:5] + [L[5]]*2, ks, table_text('tab_t', t_tables()) + '\n' + table_text('tab_i', i_tables()))
```

```python
import sys
from asmlib import *
from common import *
from tables import *
from k2 import *
from tk import *
from gemm import gen_gemm
from g2 import gen_g2
OUT = sys.argv[1] if len(sys.argv) > 1 else 'full.s'
k1 = gen_multi('k1_kernel', [(64, lambda k, w, t: emit_t(k, 'x', w, t), T_LDS), (112, lambda k, w, t: emit_t(k, 'w1', w, t), T_LDS),
                             (112, lambda k, w, t: emit_t(k, 'w2', w, t), T_LDS), (256, lambda k, w, t: emit_wprep(k, w), 0)])
k2a = gen_k2('k2a_kernel', xin=XA_OFF, xout=XB_OFF, st_off=ST_OFF, zero_off=ST2_OFF)
k2b = gen_k2('k2b_kernel', xin=XA_OFF, xout=XB_OFF, st_off=ST2_OFF)
g1 = gen_gemm('g1_kernel', 'g1', xin=XB_OFF)
g2 = gen_g2('g2_kernel', NS=4, xin=XB_OFF, xout=XA_OFF, st_off=ST2_OFF)
k3 = gen_multi('k3_kernel', [(128, lambda k, w, t: emit_k3(k, w, XA_OFF), K3_LDS)])
L = [(k1.name, k1.grid, 256, k1.lds), (k2a.name, 256, 256, k2a.lds), (g1.name, 256, 512, g1.lds), (g2.name, 256, 256, 98304),
     (k2b.name, 256, 256, k2b.lds), (g1.name, 256, 512, g1.lds), (g2.name, 256, 256, 98304), (k3.name, k3.grid, 256, k3.lds)]
data = '\n'.join([table_text('tab_k2', k2_tables()), table_text('tab_t', t_tables()), table_text('tab_i', i_tables())])
write_file(OUT, L, [k1, k2a, k2b, g1, g2, k3], data)
```
